```python
import torch

def _softmax(x, axis=-1):
    return torch.softmax(x, dim=axis)

def _gelu(x):
    return torch.nn.functional.gelu(x, approximate='tanh')

def _silu(x):
    return torch.nn.functional.silu(x)

def _sigmoid(x):
    return torch.sigmoid(x)

def _layernorm(x, axis=-1, eps=1e-05):
    m = x.mean(dim=axis, keepdim=True)
    v = x.var(dim=axis, keepdim=True, unbiased=False)
    return (x - m) / torch.sqrt(v + eps)

def _scatter_add(tgt, idx, src, axis=0):
    return tgt.clone().index_add_(axis, idx, src)

def _segment_sum(src, seg, n):
    out = torch.zeros((n,) + src.shape[1:], dtype=src.dtype)
    return out.index_add_(0, seg, src)

def _pad(x, pw):
    flat = tuple((v for pair in reversed(pw) for v in pair))
    return torch.nn.functional.pad(x, flat)
kernel_name = 'gated_mix__spectral_gfnet__memory_aug_recurrent_mem_tr__prompt'

def setup_inputs():

    _w = lambda a: (lambda t: t.to(torch.bfloat16) if t.is_floating_point() else t)(torch.as_tensor(a))

    def _A_setup():
        B, S, D = (1, 2048, 640)
        Df = D // 2 + 1
        return {'x': _w((lambda *s: torch.randn(*s, dtype=torch.bfloat16) * 0.05)(B, S, D)), 'w_r': _w((lambda *s: torch.randn(*s, dtype=torch.bfloat16) * 3.2)(S, Df) * 0.02), 'w_i': _w((lambda *s: torch.randn(*s, dtype=torch.bfloat16) * 3.2)(S, Df) * 0.02)}
    _A_in = _A_setup()

    def _B_setup():
        B, S, Dm = (1, 2048, 640)
        H, Dh = (32, 128)
        M, seg = (8, 32)
        seg = min(seg, S)
        S = S // seg * seg
        return {'x': _w((lambda *s: torch.randn(*s, dtype=torch.bfloat16) * 0.05)(B, S, Dm)), 'mem0': _w((lambda *s: torch.randn(*s, dtype=torch.bfloat16) * 0.4)(B, M, Dm)), 'Wq': _w((lambda *s: torch.randn(*s, dtype=torch.bfloat16) * 6.4)(Dm, H, Dh) * Dm ** (-0.5)), 'Wk': _w((lambda *s: torch.randn(*s, dtype=torch.bfloat16) * 6.4)(Dm, H, Dh) * Dm ** (-0.5)), 'Wv': _w((lambda *s: torch.randn(*s, dtype=torch.bfloat16) * 0.4)(Dm, H, Dh) * Dm ** (-0.5)), 'Wo': _w((lambda *s: torch.randn(*s, dtype=torch.bfloat16) * 0.4)(H, Dh, Dm) * (H * Dh) ** (-0.5)), 'seg_len': seg}
    _B_in = _B_setup()
    return {'A_x': _A_in['x'], 'A_w_r': _A_in['w_r'], 'A_w_i': _A_in['w_i'], 'B_x': _B_in['x'], 'B_mem0': _B_in['mem0'], 'B_Wq': _B_in['Wq'], 'B_Wk': _B_in['Wk'], 'B_Wv': _B_in['Wv'], 'B_Wo': _B_in['Wo'], 'B_seg_len': _B_in['seg_len'], 'gate_w': _w((lambda *s: torch.randn(*s, dtype=torch.bfloat16) * 0.05)(640) * 16.0)}

def reference(A_x, A_w_r, A_w_i, B_x, B_mem0, B_Wq, B_Wk, B_Wv, B_Wo, B_seg_len, gate_w):

    def _A_ref(x, w_r, w_i):
        B, S, D = x.shape
        X = (lambda x, axes=(-2, -1): torch.fft.rfft2(x.float(), dim=axes))(x, axes=(-2, -1))
        W = w_r + 1j * w_i
        X = X * W
        y = (lambda x, s, axes=(-2, -1): torch.fft.irfft2(x, s=s, dim=axes).to(torch.bfloat16))(X, (S, D), axes=(-2, -1))
        return y

    def _B_ref(x, mem0, Wq, Wk, Wv, Wo, seg_len):
        B, S, Dm = x.shape
        H, Dh = (Wq.shape[1], Wq.shape[2])
        M = mem0.shape[1]
        scale = Dh ** (-0.5)
        n_seg = S // seg_len
        L = M + seg_len
        idx = torch.arange(L)
        mask = (idx[:, None] < M) | (idx[:, None] >= idx[None, :])
        mem = mem0
        outs = []
        for s in range(n_seg):
            xs = x[:, s * seg_len:(s + 1) * seg_len, :].clone()
            h = torch.concatenate([mem, xs], axis=1)
            q = torch.einsum('btd,dhe->bhte', h, Wq)
            k = torch.einsum('btd,dhe->bhte', h, Wk)
            v = torch.einsum('btd,dhe->bhte', h, Wv)
            scores = torch.einsum('bhqe,bhke->bhqk', q, k) * scale
            scores = torch.where(mask[None, None], scores, -1000000000.0)
            p = _softmax(scores, axis=-1)
            o = torch.einsum('bhqk,bhke->bhqe', p, v)
            o = torch.einsum('bhte,hed->btd', o, Wo)
            mem = o[:, :M, :].clone()
            outs.append(o[:, M:, :])
        return torch.concatenate(outs, axis=1)
    x = A_x
    g = _sigmoid((x * gate_w).sum(-1, keepdims=True))
    a = _A_ref(x, A_w_r, A_w_i)
    b = _B_ref(x, B_mem0, B_Wq, B_Wk, B_Wv, B_Wo, B_seg_len)
    return g * a + (1 - g) * b
```

```python
import re
class Asm:
    def __init__(self):
        self.lines = []
        self.nlab = 0
    def __call__(self, s):
        for ln in s.strip('\n').split('\n'):
            t = ln.strip()
            m = re.search(r'offset:(\d+)', t)
            if m and t.startswith('buffer_') and int(m.group(1)) > 4095: raise ValueError('MUBUF offset too big: ' + t)
            if m and t.startswith('ds_') and int(m.group(1)) > 65535: raise ValueError('DS offset too big: ' + t)
            self.lines.append('    ' + t)
    def label(self, name):
        self.lines.append(name + ':')
    def newlabel(self, base='L'):
        self.nlab += 1
        return f'.{base}_{self.nlab}'
    def raw(self, s):
        self.lines.append(s)
    def text(self):
        return '\n'.join(self.lines) + '\n'

def vr(b, n=1):
    return f'v{b}' if n == 1 else f'v[{b}:{b+n-1}]'
def ar(b, n=1):
    return f'a{b}' if n == 1 else f'a[{b}:{b+n-1}]'
def sr(b, n=1):
    return f's{b}' if n == 1 else f's[{b}:{b+n-1}]'
```

```python
from asmlib import *
from layout import *
from gen import *

MSTR   = 1344
C_MEM  = 0
C_SC   = 12160
C_VM   = C_SC + 12288
C_RD   = C_VM + 2048
C_WO   = C_RD + 2048
C_STG  = C_WO + 81920
SSTR   = 656
C_LDS  = C_STG + 2*32*SSTR

def wreg(f):
    return ('a', 4*f) if f < 64 else ('v', 112 + 4*(f-64))
def wr4(f):
    t, b = wreg(f); return f'{t}[{b}:{b+3}]'
def wr2(f, hf):
    t, b = wreg(f); return f'{t}[{b+2*hf}:{b+2*hf+1}]'

def task_chain(A, standalone=True):
    srd(A, 12, I_WQ, 640*8192); srd(A, 24, I_WK, 640*8192); srd(A, 28, I_WV, 640*8192); srd(A, 68, I_WO, 4096*1280); srd(A, 72, I_MEM0, 10240)
    A('''s_lshr_b32 s4, s3, 1          ; head
         s_and_b32 s5, s3, 1           ; half j
         v_and_b32 v1, 63, v0
         v_lshrrev_b32 v2, 6, v0
         s_nop 0
         v_readfirstlane_b32 s6, v2    ; wave
         v_and_b32 v3, 15, v1          ; rho / i
         v_lshrrev_b32 v4, 4, v1       ; g
         v_lshrrev_b32 v5, 2, v3       ; rho>>2
         v_and_b32 v6, 3, v3           ; rho&3''')
    A(f'''v_lshrrev_b32 v8, 4, v0
          v_and_b32 v9, 15, v0
          v_lshlrev_b32 v10, 13, v8
          v_lshl_add_u32 v10, v9, 4, v10
          s_lshl_b32 s7, s4, 8
          v_add_u32 v10, s7, v10          ; q/k rows 0..15
          v_add_u32 v11, {16*8192}, v10   ; rows 16..31
          v_mul_u32_u24 v12, {SSTR}, v8
          v_lshl_add_u32 v12, v9, 4, v12
          v_add_u32 v12, {C_STG}, v12
          v_lshrrev_b32 v8, 3, v0
          v_and_b32 v9, 7, v0
          v_lshlrev_b32 v13, 13, v8
          v_lshl_add_u32 v13, v9, 4, v13
          s_lshl_b32 s37, s5, 7
          s_add_u32 s7, s7, s37
          v_add_u32 v13, s7, v13          ; v global
          v_mul_u32_u24 v14, {SSTR}, v8
          v_lshl_add_u32 v14, v9, 4, v14
          v_add_u32 v14, {C_STG+512}, v14''')
    A(f'''v_lshl_add_u32 v8, v4, 3, v5
          v_mul_u32_u24 v15, {SSTR}, v8
          v_lshl_add_u32 v15, v6, 4, v15       ; + 8c*2
          v_add_u32 v15, {C_STG}, v15
          s_lshl_b32 s7, s6, 6                 ; 32w*2
          v_add_u32 v16, s7, v15               ; q/k base
          s_lshr_b32 s7, s6, 1
          s_lshl_b32 s7, s7, 6                 ; 32(w>>1)*2
          s_and_b32 s37, s6, 1
          s_lshl_b32 s37, s37, 3               ; 4(w&1)*2
          s_add_u32 s7, s7, s37
          s_add_u32 s7, s7, 512
          v_add_u32 v17, s7, v15               ; v base''')
    def wl_issue(kk):
        A(f's_mov_b32 s38, {kk*32*8192}')
        A(f'''buffer_load_dwordx4 v[20:23], v10, s[12:15], s38 offen
              buffer_load_dwordx4 v[24:27], v11, s[12:15], s38 offen
              buffer_load_dwordx4 v[28:31], v10, s[24:27], s38 offen
              buffer_load_dwordx4 v[32:35], v11, s[24:27], s38 offen
              buffer_load_dwordx4 v[36:39], v13, s[28:31], s38 offen''')
    def wl_write(buf):
        o = buf*32*SSTR
        A(f'''ds_write_b128 v12, v[20:23] offset:{o}
              ds_write_b128 v12, v[24:27] offset:{o+16*SSTR}
              ds_write_b128 v12, v[28:31] offset:{o+256}
              ds_write_b128 v12, v[32:35] offset:{o+16*SSTR+256}
              ds_write_b128 v14, v[36:39] offset:{o}''')
    def wl_read(kk, buf):
        o = buf*32*SSTR
        for tile in range(4):
            for hf in range(2):
                off = o + 4*hf*SSTR + (tile>>1)*256 + (tile&1)*8
                A(f'ds_read_b64_tr_b16 {wr2(tile*20+kk, hf)}, v16 offset:{off}')
        for hf in range(2):
            A(f'ds_read_b64_tr_b16 {wr2(80+kk, hf)}, v17 offset:{o+4*hf*SSTR}')
    wl_issue(0)
    for kk in range(20):
        A('s_waitcnt vmcnt(0)')
        wl_write(kk&1)
        if kk < 19: wl_issue(kk+1)
        A('s_waitcnt lgkmcnt(0)\ns_barrier')
        wl_read(kk, kk&1)
    A('s_waitcnt lgkmcnt(0)\ns_barrier')
    WSTR = 1296
    A(f'''s_lshl_b32 s7, s4, 7
          s_lshl_b32 s37, s5, 6
          s_add_u32 s7, s7, s37               ; h*128 + 64j
          s_lshl_b32 s37, s6, 3
          s_add_u32 s7, s7, s37               ; + 8w
          s_mul_i32 s7, s7, 1280
          v_lshlrev_b32 v10, 4, v1
          v_add_u32 v10, s7, v10              ; global x4
          v_lshlrev_b32 v11, 2, v1
          v_add_u32 v11, s7, v11
          v_add_u32 v11, 1024, v11            ; global x1
          s_mul_i32 s7, s37, {WSTR}
          s_add_u32 s7, s7, {C_STG}
          v_lshlrev_b32 v12, 4, v1
          v_add_u32 v12, s7, v12              ; lds x4
          v_lshlrev_b32 v13, 2, v1
          v_add_u32 v13, s7, v13
          v_add_u32 v13, 1024, v13            ; lds x1
          v_lshl_add_u32 v8, v4, 3, v5
          v_mul_u32_u24 v15, {WSTR}, v8
          v_lshl_add_u32 v15, v6, 3, v15      ; + 4c*2
          s_mul_i32 s7, s6, 320
          s_add_u32 s7, s7, {C_STG}
          v_add_u32 v15, s7, v15
          s_mul_i32 s7, s6, 20480
          s_add_u32 s7, s7, {C_WO}
          v_lshlrev_b32 v16, 4, v1
          v_add_u32 v16, s7, v16''')
    for kk in range(2):
        for half in range(2):
            for r in range(4):
                rr = half*4 + r
                A(f's_mov_b32 s38, {(kk*32+rr)*1280}')
                A(f'buffer_load_dwordx4 v[{20+4*r}:{23+4*r}], v10, s[68:71], s38 offen')
                A(f'buffer_load_dword v{36+r}, v11, s[68:71], s38 offen')
            A('s_waitcnt vmcnt(0)')
            for r in range(4):
                rr = half*4 + r
                A(f'ds_write_b128 v12, v[{20+4*r}:{23+4*r}] offset:{rr*WSTR}')
                A(f'ds_write_b32 v13, v{36+r} offset:{rr*WSTR}')
        A('s_waitcnt lgkmcnt(0)\ns_barrier')
        for T in range(10):
            for hf in range(2):
                A(f'ds_read_b64_tr_b16 v[{20+4*T+2*hf}:{21+4*T+2*hf}], v15 offset:{4*hf*WSTR + T*32}')
        A('s_waitcnt lgkmcnt(0)')
        for T in range(10):
            A(f'ds_write_b128 v16, v[{20+4*T}:{23+4*T}] offset:{(T*2+kk)*1024}')
        A('s_waitcnt lgkmcnt(0)\ns_barrier')
    A('v_mov_b32 v2, v16')
    A(f'''v_min_u32 v7, 8, v3
          v_mul_u32_u24 v7, {MSTR}, v7
          v_lshl_add_u32 v7, v4, 4, v7
          v_add_u32 v7, {C_MEM}, v7''')
    A(f'''v_lshl_add_u32 v8, v5, 3, v6
          v_lshlrev_b32 v8, 13, v8
          v_lshl_add_u32 v8, v4, 4, v8
          s_lshl_b32 s7, s4, 8
          s_lshl_b32 s37, s6, 6
          s_add_u32 s7, s7, s37
          s_add_u32 s7, s7, {KX}
          v_add_u32 v8, s7, v8''')
    A(f'''v_lshl_add_u32 v9, v5, 3, v6
          v_lshlrev_b32 v9, 6, v9
          v_lshl_add_u32 v9, v4, 4, v9
          s_lshl_b32 s7, s4, 13
          s_lshl_b32 s37, s5, 12
          s_add_u32 s7, s7, s37
          s_add_u32 s7, s7, {VXT}
          v_add_u32 v9, s7, v9''')
    A(f'''v_lshl_add_u32 v10, v4, 3, v3
          v_lshlrev_b32 v10, 4, v10
          s_mul_i32 s7, s3, 20480
          s_mul_i32 s37, s6, 5120
          s_add_u32 s7, s7, s37
          s_add_u32 s7, s7, {PART}
          v_add_u32 v10, s7, v10
          v_cmp_lt_u32 vcc, 7, v3
          v_mov_b32 v20, 0x7ff00000
          s_nop 1
          v_cndmask_b32 v10, v10, v20, vcc''')
    A(f'''v_lshrrev_b32 v11, 5, v1
          v_mul_u32_u24 v11, 20480, v11
          v_and_b32 v20, 31, v1
          v_lshl_add_u32 v11, v20, 4, v11
          s_mul_i32 s7, s6, {16*20480}
          s_lshl_b32 s37, s3, 9
          s_add_u32 s7, s7, s37
          s_add_u32 s7, s7, {PART}
          v_add_u32 v11, s7, v11''')
    A(f'''v_and_b32 v12, 7, v1
          v_mul_u32_u24 v12, 1280, v12
          v_lshrrev_b32 v20, 3, v1
          v_lshl_add_u32 v12, v20, 3, v12
          s_lshl_b32 s7, s3, 5
          s_add_u32 s7, s7, {MEMB}
          v_add_u32 v12, s7, v12
          v_cmp_lt_u32 vcc, 31, v1
          v_mov_b32 v20, 0x7ff00000
          s_nop 1
          v_cndmask_b32 v12, v12, v20, vcc''')
    A(f'''v_lshlrev_b32 v13, 3, v0
          v_add_u32 v13, {MEMB}, v13''')
    for k in range(5):
        A(f'''v_add_u32 v20, {k*256}, v0
              v_mul_u32_u24 v21, 52429, v20
              v_lshrrev_b32 v21, 23, v21          ; i = idx/160
              v_mul_u32_u24 v22, 160, v21
              v_sub_u32 v22, v20, v22
              v_mul_u32_u24 v21, {MSTR}, v21
              v_lshl_add_u32 v21, v22, 3, v21
              v_add_u32 v{104+k}, {C_MEM}, v21''')
    A(f'''v_lshlrev_b32 v14, 8, v3
          v_lshl_add_u32 v14, v4, 4, v14
          s_lshl_b32 s7, s4, 11
          s_lshl_b32 s37, s6, 6
          s_add_u32 s7, s7, s37
          s_add_u32 s7, s7, {KM}
          s_cmp_eq_u32 s5, 0
          s_cselect_b32 s7, s7, 0x7ff00000
          v_add_u32 v14, s7, v14
          v_cmp_lt_u32 vcc, 7, v3
          v_mov_b32 v20, 0x7ff00000
          s_nop 1
          v_cndmask_b32 v14, v14, v20, vcc''')
    A(f'''v_lshl_add_u32 v15, v5, 3, v6
          v_lshlrev_b32 v15, 4, v15
          v_lshl_add_u32 v15, v4, 3, v15
          s_lshl_b32 s7, s4, 11
          s_lshl_b32 s37, s5, 10
          s_add_u32 s7, s7, s37
          s_lshr_b32 s37, s6, 1
          s_lshl_b32 s37, s37, 9
          s_add_u32 s7, s7, s37
          s_and_b32 s37, s6, 1
          s_lshl_b32 s37, s37, 6
          s_add_u32 s7, s7, s37
          s_add_u32 s7, s7, {VMT}
          v_add_u32 v15, s7, v15
          v_cmp_lt_u32 vcc, 1, v4
          v_mov_b32 v20, 0x7ff00000
          s_nop 1
          v_cndmask_b32 v15, v15, v20, vcc''')
    A(f'''v_lshlrev_b32 v110, 4, v1
          s_mul_i32 s7, s6, 3072
          s_add_u32 s7, s7, {C_SC}
          v_add_u32 v109, s7, v110
          v_mov_b32 v111, 1
          s_mov_b32 s76, 0
          s_mov_b32 s77, -1
          s_mov_b32 s78, 0xfffffffe
          s_mov_b32 s79, 0              ; step
          s_mov_b32 s80, 0              ; seg*32*8192
          s_mov_b32 s81, {4*8192}       ; seg*32*8192 + 4*8192
          s_mov_b32 s82, 0              ; seg*65536
          s_mov_b32 s83, 0              ; step*10240
          s_mov_b32 s87, 4096
          s_mov_b32 s88, 8192
          s_mov_b32 s86, 4096
          s_mov_b32 s89, 8192''')
    A(f'''v_mov_b32 v20, 0
          v_mov_b32 v21, 0
          v_lshlrev_b32 v22, 3, v0
          v_add_u32 v22, {C_MEM + 8*MSTR}, v22
          v_cmp_gt_u32 vcc, 160, v0
          s_and_saveexec_b64 s[84:85], vcc
          ds_write_b64 v22, v[20:21]
          s_mov_b64 exec, s[84:85]
          v_lshlrev_b32 v22, 3, v0''')
    for k in range(5):
        A(f'buffer_load_dwordx2 v[{24+2*k}:{25+2*k}], v22, s[72:75], {["0","0","s86","s86","s89"][k]} offen offset:{(k&1)*2048}')
    def kv_prefetch():
        A(f'''buffer_load_dwordx4 v[56:59], v8, s[16:19], s80 offen sc1
              buffer_load_dwordx4 v[60:63], v8, s[16:19], s81 offen sc1''')
        for pt in range(4):
            A(f'buffer_load_dwordx4 v[{64+4*pt}:{67+4*pt}], v9, s[16:19], s80 offen offset:{(32*(pt>>1)+4*(pt&1))*64} sc1')
    kv_prefetch()
    A('s_waitcnt vmcnt(6)')
    for k in range(5):
        A(f'ds_write_b64 v{104+k}, v[{24+2*k}:{25+2*k}]')
    Ltop = A.newlabel('ctop'); Lend = A.newlabel('cend'); Lnored = A.newlabel('cnored')
    A.label(Ltop)
    A('s_waitcnt lgkmcnt(0)\ns_barrier')
    for i in range(20): A(f'v_mov_b32 v{16+i}, 0')
    A('ds_read_b128 v[36:39], v7')
    for kk in range(20):
        cur = 36 + 4*(kk&1); nxt = 36 + 4*((kk+1)&1)
        if kk < 19:
            A(f'ds_read_b128 v[{nxt}:{nxt+3}], v7 offset:{(kk+1)*64}')
            A('s_waitcnt lgkmcnt(1)')
        else:
            A('s_waitcnt lgkmcnt(0)')
        for tile in range(4):
            A(f'v_mfma_f32_16x16x32_bf16 v[{16+4*tile}:{19+4*tile}], {wr4(tile*20+kk)}, v[{cur}:{cur+3}], v[{16+4*tile}:{19+4*tile}]')
        A(f'v_mfma_f32_16x16x32_bf16 v[32:35], v[{cur}:{cur+3}], {wr4(80+kk)}, v[32:35]')
    A('s_nop 3')
    A('''v_cvt_pk_bf16_f32 v48, v24, v25
         v_cvt_pk_bf16_f32 v49, v26, v27
         v_cvt_pk_bf16_f32 v44, v16, v17
         v_cvt_pk_bf16_f32 v45, v18, v19
         v_cvt_pk_bf16_f32 v46, v20, v21
         v_cvt_pk_bf16_f32 v47, v22, v23
         v_cvt_pk_bf16_f32 v50, v28, v29
         v_cvt_pk_bf16_f32 v51, v30, v31
         v_cvt_pk_bf16_f32 v52, v32, v33
         v_cvt_pk_bf16_f32 v53, v34, v35''')
    A('''buffer_store_dwordx4 v[48:51], v14, s[16:19], s82 offen sc1
         buffer_store_dwordx2 v[52:53], v15, s[16:19], s82 offen sc1''')
    A(f's_cmp_eq_u32 s79, 63\ns_cbranch_scc1 {Lend}')
    A(f'''s_lshl_b32 s7, s6, 9
          v_lshlrev_b32 v54, 3, v1
          v_add_u32 v54, s7, v54
          ds_write_b64 v54, v[52:53] offset:{C_VM}''')
    A('s_waitcnt vmcnt(2)')
    A('''v_mfma_f32_16x16x32_bf16 v[80:83], v[48:51], v[44:47], 0
         v_mfma_f32_16x16x32_bf16 v[84:87], v[56:59], v[44:47], 0
         v_mfma_f32_16x16x32_bf16 v[88:91], v[60:63], v[44:47], 0
         s_nop 5
         ds_write_b128 v109, v[80:83]
         ds_write_b128 v109, v[84:87] offset:1024
         ds_write_b128 v109, v[88:91] offset:2048
         s_waitcnt lgkmcnt(0)
         s_barrier''')
    for w in range(4):
        dst = 80 if w == 0 else 92
        for t in range(3):
            A(f'ds_read_b128 v[{dst+4*t}:{dst+4*t+3}], v110 offset:{C_SC + w*3072 + t*1024}')
        if w > 0:
            A('s_waitcnt lgkmcnt(0)')
            for i in range(12): A(f'v_add_f32 v{80+i}, v{80+i}, v{92+i}')
    A('v_lshlrev_b32 v54, 3, v1')
    for pt in range(4):
        A(f'ds_read_b64 v[{32+2*pt}:{33+2*pt}], v54 offset:{C_VM + pt*512}')
    for i in range(0, 12, 2):
        A(f'''v_cvt_pk_bf16_f32 v92, v{80+i}, v{81+i}
              v_lshlrev_b32 v93, 16, v92
              v_and_b32 v94, 0xffff0000, v92
              v_mul_f32 v93, 0x3db504f3, v93
              v_mul_f32 v94, 0x3db504f3, v94
              v_cvt_pk_bf16_f32 v92, v93, v94
              v_lshlrev_b32 v{80+i}, 16, v92
              v_and_b32 v{81+i}, 0xffff0000, v92''')
    A('v_mov_b32 v92, 0xff800000')
    for i in range(4): A(f'v_cndmask_b32 v{80+i}, v{80+i}, v92, s[76:77]')
    A('''v_max3_f32 v92, v80, v81, v82
         v_max3_f32 v93, v83, v84, v85
         v_max3_f32 v94, v86, v87, v88
         v_max3_f32 v95, v89, v90, v91
         v_max3_f32 v92, v92, v93, v94
         v_max_f32 v92, v92, v95
         v_mov_b32 v93, v92
         s_nop 1
         v_permlane32_swap_b32 v92, v93
         v_max_f32 v92, v92, v93
         v_mov_b32 v93, v92
         s_nop 1
         v_permlane16_swap_b32 v92, v93
         v_max_f32 v92, v92, v93''')
    for i in range(12):
        A(f'''v_sub_f32 v{80+i}, v{80+i}, v92
              v_mul_f32 v{80+i}, 0x3fb8aa3b, v{80+i}
              v_exp_f32 v{80+i}, v{80+i}''')
    A('''s_nop 0
         v_add_f32 v92, v80, v81
         v_add_f32 v93, v82, v83
         v_add_f32 v94, v84, v85
         v_add_f32 v95, v86, v87
         v_add_f32 v96, v88, v89
         v_add_f32 v97, v90, v91
         v_add_f32 v92, v92, v93
         v_add_f32 v94, v94, v95
         v_add_f32 v96, v96, v97
         v_add_f32 v92, v92, v94
         v_add_f32 v92, v92, v96
         v_mov_b32 v93, v92
         s_nop 1
         v_permlane32_swap_b32 v92, v93
         v_add_f32 v92, v92, v93
         v_mov_b32 v93, v92
         s_nop 1
         v_permlane16_swap_b32 v92, v93
         v_add_f32 v92, v92, v93
         v_rcp_f32 v92, v92
         s_nop 0''')
    for i in range(12): A(f'v_mul_f32 v{80+i}, v{80+i}, v92')
    A('''v_cvt_pk_bf16_f32 v48, v80, v81
         v_cvt_pk_bf16_f32 v49, v82, v83
         v_cvt_pk_bf16_f32 v44, v84, v85
         v_cvt_pk_bf16_f32 v45, v86, v87
         v_cvt_pk_bf16_f32 v46, v88, v89
         v_cvt_pk_bf16_f32 v47, v90, v91
         s_waitcnt lgkmcnt(0)
         s_nop 0''')
    for pt in range(4):
        A(f'v_mfma_f32_16x16x32_bf16 v[{16+4*pt}:{19+4*pt}], v[{64+4*pt}:{67+4*pt}], v[44:47], 0')
    for pt in range(4):
        A(f'v_mfma_f32_16x16x16_bf16 v[{16+4*pt}:{19+4*pt}], v[{32+2*pt}:{33+2*pt}], v[48:49], v[{16+4*pt}:{19+4*pt}]')
    A(f'''s_add_u32 s80, s80, {32*8192}
          s_add_u32 s81, s81, {32*8192}
          s_add_u32 s82, s82, 65536''')
    A('ds_read_b128 v[40:43], v2\nds_read_b128 v[44:47], v2 offset:1024')
    A('s_nop 3')
    kv_prefetch()
    for pt in range(4):
        A(f'''v_cvt_pk_bf16_f32 v{96+2*pt}, v{16+4*pt}, v{17+4*pt}
              v_cvt_pk_bf16_f32 v{97+2*pt}, v{18+4*pt}, v{19+4*pt}''')
    def accT(T): return 16+4*T if T < 6 else 80+4*(T-6)
    for T in range(10):
        cur = 40 + 8*(T&1); nxt = 40 + 8*((T+1)&1)
        if T > 0 or True:
            pass
        if T < 9:
            A(f'ds_read_b128 v[{nxt}:{nxt+3}], v2 offset:{(T+1)*2048}\nds_read_b128 v[{nxt+4}:{nxt+7}], v2 offset:{(T+1)*2048+1024}')
            A('s_waitcnt lgkmcnt(2)')
        else:
            A('s_waitcnt lgkmcnt(0)')
        a = accT(T)
        A(f'v_mfma_f32_16x16x32_bf16 v[{a}:{a+3}], v[{cur}:{cur+3}], v[96:99], 0')
        A(f'v_mfma_f32_16x16x32_bf16 v[{a}:{a+3}], v[{cur+4}:{cur+7}], v[100:103], v[{a}:{a+3}]')
    A('s_nop 7')
    for T in range(10):
        a = accT(T)
        for r in range(4): A(f'v_and_or_b32 v{a+r}, v{a+r}, s78, v111')
        A(f'buffer_store_dwordx4 v[{a}:{a+3}], v10, s[16:19], {"0" if T < 8 else "s86"} offen offset:{(T&7)*512} sc1')
    A(f's_cmp_ge_u32 s3, 40\ns_cbranch_scc1 {Lnored}')
    Lp = A.newlabel('cpollB')
    A('s_mov_b32 s90, 0')
    A.label(Lp)
    A(f's_add_u32 s90, s90, 1\ns_cmp_gt_u32 s90, 400000\ns_cbranch_scc1 {Lend}')
    for k in range(8):
        A(f's_mov_b32 s7, {k*2*20480}\nbuffer_load_dwordx4 v[{16+4*k}:{19+4*k}], v11, s[16:19], s7 offen sc1')
    A('s_waitcnt vmcnt(0)')
    A('v_xor_b32 v48, v16, v111')
    for i in range(1, 32):
        A(f'v_xor_b32 v49, v{16+i}, v111\nv_or_b32 v48, v48, v49')
    A(f'''v_and_b32 v48, 1, v48
          v_cmp_ne_u32 vcc, 0, v48
          s_cbranch_vccnz {Lp}''')
    for k in range(1, 8):
        for r in range(4): A(f'v_add_f32 v{16+r}, v{16+r}, v{16+4*k+r}')
    for r in range(4): A(f'v_mov_b32 v{20+r}, v{16+r}')
    A('s_nop 1')
    for r in range(4): A(f'v_permlane32_swap_b32 v{16+r}, v{20+r}')
    for r in range(4): A(f'v_add_f32 v{16+r}, v{16+r}, v{20+r}')
    A(f'''s_lshl_b32 s7, s6, 9
          v_and_b32 v48, 31, v1
          v_lshlrev_b32 v48, 4, v48
          v_add_u32 v49, s7, v48
          ds_write_b128 v49, v[16:19] offset:{C_RD}
          s_waitcnt lgkmcnt(0)
          s_barrier''')
    Lnp = A.newlabel('cnopub')
    A(f's_cmp_lg_u32 s6, 0\ns_cbranch_scc1 {Lnp}')
    for w in range(4): A(f'ds_read_b128 v[{16+4*w}:{19+4*w}], v48 offset:{C_RD + w*512}')
    A('s_waitcnt lgkmcnt(0)')
    for r in range(4): A(f'v_add_f32 v{16+r}, v{16+r}, v{20+r}\nv_add_f32 v{24+r}, v{24+r}, v{28+r}')
    for r in range(4): A(f'v_add_f32 v{16+r}, v{16+r}, v{24+r}')
    A('''v_cvt_pk_bf16_f32 v20, v16, v17
         v_cvt_pk_bf16_f32 v21, v18, v19
         v_mov_b32 v22, 0x7fff7fff
         v_cmp_eq_u32 vcc, -1, v20
         s_nop 1
         v_cndmask_b32 v20, v20, v22, vcc
         v_cmp_eq_u32 vcc, -1, v21
         s_nop 1
         v_cndmask_b32 v21, v21, v22, vcc
         buffer_store_dwordx2 v[20:21], v12, s[16:19], s83 offen sc1''')
    A.label(Lnp)
    A.label(Lnored)
    Lg = A.newlabel('cpollA')
    A('s_mov_b32 s90, 0')
    A.label(Lg)
    A(f's_add_u32 s90, s90, 1\ns_cmp_gt_u32 s90, 400000\ns_cbranch_scc1 {Lend}')
    for k in range(5):
        A(f'buffer_load_dwordx2 v[{24+2*k}:{25+2*k}], v13, s[16:19], {["s83","s83","s87","s87","s88"][k]} offen offset:{(k&1)*2048} sc1')
    A('s_waitcnt vmcnt(0)')
    A('v_cmp_eq_u32 vcc, -1, v24')
    for i in range(1, 10):
        A(f'v_cmp_eq_u32 s[84:85], -1, v{24+i}\ns_or_b64 vcc, vcc, s[84:85]')
    A(f's_cbranch_vccnz {Lg}')
    for k in range(5):
        A(f'ds_write_b64 v{104+k}, v[{24+2*k}:{25+2*k}]')
    A(f'''s_add_u32 s79, s79, 1
          s_add_u32 s83, s83, 10240
          s_add_u32 s87, s87, 10240
          s_add_u32 s88, s88, 10240
          v_xor_b32 v111, 1, v111
          s_branch {Ltop}''')
    A.label(Lend)

def task_init(A):
    A(f'''s_lshl_b32 s4, s3, 12
          v_lshlrev_b32 v1, 4, v0
          v_add_u32 v1, s4, v1
          v_mov_b32 v4, 0
          v_mov_b32 v5, 0
          v_mov_b32 v6, 0
          v_mov_b32 v7, 0
          v_mov_b32 v8, -1
          v_mov_b32 v9, -1
          v_mov_b32 v10, -1
          v_mov_b32 v11, -1''')
    for p in range(5):
        A(f's_mov_b32 s5, {PART + p*262144}\nbuffer_store_dwordx4 v[4:7], v1, s[16:19], s5 offen')
    for p in range(3):
        A(f's_mov_b32 s5, {MEMB + p*262144}\nbuffer_store_dwordx4 v[8:11], v1, s[16:19], s5 offen')

if __name__ == '__main__':
    build([('init_kernel', 64, 0, task_init, (256, 256)),
           ('proj_kernel', 1536, P_LDS, task_P, (256, 256)),
           ('chain_kernel', 64, C_LDS, task_chain, (512, 256))], 't2.s')
    print('C_LDS', C_LDS)
```

```python
from asmlib import *
from layout import *
from gen import *

def lane_ids(A):
    A('''v_and_b32 v1, 63, v0
         v_lshrrev_b32 v2, 6, v0
         s_nop 0
         v_readfirstlane_b32 s6, v2
         v_and_b32 v3, 15, v1          ; rho / n
         v_lshrrev_b32 v4, 4, v1       ; kq / g''')

def cos_table(A, base):
    for p in range(3):
        A(f'''v_add_u32 v10, {p*256}, v0
              v_cvt_f32_u32 v11, v10
              v_mul_f32 v11, 0x3acccccd, v11
              v_cos_f32 v11, v11
              v_lshlrev_b32 v10, 2, v10
              v_cmp_gt_u32 vcc, 2560, v10
              s_and_saveexec_b64 s[84:85], vcc
              ds_write_b32 v10, v11 offset:{base}
              s_mov_b64 exec, s[84:85]''')

def mod2560(A, r, t, times):
    for _ in range(times):
        A(f'v_subrev_u32 v{t}, 2560, v{r}\nv_min_u32 v{r}, v{r}, v{t}')

F1_TAB = 0
F1_X = 2560
F1_XSTR = 1296
F1_LDS = F1_X + 64*F1_XSTR
def task_F1(A):
    lane_ids(A)
    A('''s_mul_i32 s30, s3, 43691
         s_lshr_b32 s30, s30, 18           ; rb = s3/6
         s_mul_i32 s31, s30, 6
         s_sub_u32 s31, s3, s31            ; fg''')
    cos_table(A, F1_TAB)
    A(f'''s_lshl_b32 s7, s30, 6
          s_lshl_b32 s32, s6, 4
          s_add_u32 s7, s7, s32
          s_mul_i32 s7, s7, 1280
          v_lshlrev_b32 v10, 4, v1
          v_add_u32 v10, s7, v10
          v_lshlrev_b32 v11, 2, v1
          v_add_u32 v11, s7, v11
          v_add_u32 v11, 1024, v11
          s_mul_i32 s7, s32, {F1_XSTR}
          s_add_u32 s7, s7, {F1_X}
          v_lshlrev_b32 v12, 4, v1
          v_add_u32 v12, s7, v12
          v_lshlrev_b32 v13, 2, v1
          v_add_u32 v13, s7, v13
          v_add_u32 v13, 1024, v13''')
    for half in range(2):
        for r in range(8):
            A(f's_mov_b32 s33, {(half*8+r)*1280}')
            A(f'buffer_load_dwordx4 v[{64+4*r}:{67+4*r}], v10, s[8:11], s33 offen\nbuffer_load_dword v{96+r}, v11, s[8:11], s33 offen')
        A('s_waitcnt vmcnt(0)')
        for r in range(8):
            A(f'ds_write_b128 v12, v[{64+4*r}:{67+4*r}] offset:{(half*8+r)*F1_XSTR}\nds_write_b32 v13, v{96+r} offset:{(half*8+r)*F1_XSTR}')
    A('''v_lshrrev_b32 v5, 1, v3
         v_and_b32 v6, 1, v3
         s_mul_i32 s7, s31, 56
         v_add_u32 v5, s7, v5
         v_mul_u32_u24 v6, 640, v6       ; 160*4*comp''')
    for ft in range(7):
        A(f'''v_add_u32 v7, {8*ft}, v5
              v_mul_u32_u24 v8, v7, v4
              v_lshl_add_u32 v{16+ft}, v8, 2, v6
              v_lshlrev_b32 v{24+ft}, 4, v7''')
        mod2560(A, 16+ft, 9, 2); mod2560(A, 24+ft, 9, 2)
    A(f'''s_mul_i32 s7, s32, {F1_XSTR}
          s_add_u32 s7, s7, {F1_X}
          v_mul_u32_u24 v14, {F1_XSTR}, v3
          v_lshl_add_u32 v14, v4, 1, v14
          v_add_u32 v14, s7, v14
          v_mov_b32 v46, 0
          v_mov_b32 v47, 0''')
    for i in range(28): A(f'v_mov_b32 v{64+i}, 0')
    A('s_waitcnt lgkmcnt(0)\ns_barrier')
    def issue(buf, boff):
        for ft in range(7):
            A(f'ds_read_b32 v{32+7*buf+ft}, v{16+ft} offset:{F1_TAB}')
        A(f'ds_read_u16_d16_hi v{46+buf}, v14 offset:{boff}')
        for ft in range(7):
            A(f'v_add_u32 v{16+ft}, v{16+ft}, v{24+ft}')
            mod2560(A, 16+ft, 9, 1)
    issue(0, 0)
    A('s_mov_b32 s33, 0')
    L = A.newlabel('f1l'); A.label(L)
    for u in range(4):
        issue((u+1)&1, (u+1)*8)
        A('s_waitcnt lgkmcnt(8)')
        for ft in range(7):
            A(f'v_mfma_f32_16x16x4_f32 v[{64+4*ft}:{67+4*ft}], v{32+7*(u&1)+ft}, v{46+(u&1)}, v[{64+4*ft}:{67+4*ft}]')
    A(f'v_add_u32 v14, 32, v14\ns_add_u32 s33, s33, 1\ns_cmp_lt_u32 s33, 40\ns_cbranch_scc1 {L}')
    A('s_waitcnt lgkmcnt(0)\ns_nop 7\ns_nop 3')
    A(f'''s_mul_i32 s7, s31, 56
          v_lshl_add_u32 v5, v4, 1, s7
          s_lshl_b32 s7, s30, 6
          s_add_u32 s7, s7, s32
          s_lshl_b32 s7, s7, 3
          s_add_u32 s7, s7, {X1T}
          v_lshlrev_b32 v6, 3, v3
          v_add_u32 v6, s7, v6
          v_mov_b32 v9, 0x7ff00000''')
    for ft in range(7):
        for h in range(2):
            A(f'''v_add_u32 v7, {8*ft+h}, v5
                  v_lshl_add_u32 v8, v7, 14, v6
                  v_cmp_lt_u32 vcc, 320, v7
                  s_nop 1
                  v_cndmask_b32 v8, v8, v9, vcc
                  buffer_store_dwordx2 v[{64+4*ft+2*h}:{65+4*ft+2*h}], v8, s[16:19], 0 offen sc1''')

F2_D0 = 0
F2_D1 = 16384
F2_LDS = 32768
def gen_dft_regs(A, dst, nsteps, rowbase_sgpr_expr, N, rowadd):
    A(f'v_add_u32 v7, {rowbase_sgpr_expr}, v5')
    if rowadd: A(f'v_add_u32 v7, {rowadd}, v7')
    inv = {32: '0x3d000000', 64: '0x3c800000'}[N]
    for st in range(nsteps):
        A(f'''v_add_u32 v8, {2*st}, v6
              v_mul_u32_u24 v8, v8, v7
              v_and_b32 v8, {N-1}, v8
              v_cvt_f32_u32 v8, v8
              v_fma_f32 v8, v8, s34, v15
              v_cos_f32 v{dst+st}, v8''' .replace('s34', 's34' if N == 32 else 's35'))

def cmul_tw(A, re, im, ang, t0):
    c, s, a, b = t0, t0+1, t0+2, t0+3
    A(f'''v_cos_f32 v{c}, v{ang}
          v_sin_f32 v{s}, v{ang}
          s_nop 0
          v_mul_f32 v{a}, v{re}, v{c}
          v_mul_f32 v{b}, v{im}, v{c}
          v_fma_f32 v{a}, v{im}, v{s}, v{a}
          v_fma_f32 v{im}, -v{re}, v{s}, v{b}
          v_mov_b32 v{re}, v{a}''')

def task_F2(A):
    srd(A, 24, I_WR, 2048*642); srd(A, 28, I_WI, 2048*642)
    lane_ids(A)
    A(f'''s_lshl_b32 s30, s3, 14
          s_add_u32 s30, s30, {X1T}
          v_lshlrev_b32 v10, 4, v0''')
    for p in range(4):
        A(f's_add_u32 s7, s30, {p*4096}\nbuffer_load_dwordx4 v[{16+4*p}:{19+4*p}], v10, s[16:19], s7 offen sc1')
    A('''s_lshl_b32 s7, s6, 4
         v_lshl_add_u32 v11, v4, 1, s7        ; 16w + 2g
         v_lshl_add_u32 v11, v11, 5, v3       ; *32 + n
         v_mul_u32_u24 v11, 642, v11
         s_lshl_b32 s7, s3, 1
         v_add_u32 v11, s7, v11''')
    for rt in range(2):
        for ct in range(2):
            for h in range(2):
                idx = (rt*2+ct)*2+h
                A(f's_mov_b32 s7, {((8*rt+h)*32 + 16*ct)*642}')
                A(f'buffer_load_short_d16_hi v{200+idx}, v11, s[24:27], s7 offen\nbuffer_load_short_d16_hi v{208+idx}, v11, s[28:31], s7 offen')
    A('''v_lshrrev_b32 v5, 1, v3          ; rho>>1
         v_lshrrev_b32 v6, 1, v4          ; kq>>1
         v_and_b32 v7, 1, v3              ; c
         v_and_b32 v8, 1, v4              ; c'
         v_sub_u32 v9, v7, v8
         v_cvt_f32_i32 v9, v9
         v_mul_f32 v15, 0.25, v9
         s_mov_b32 s34, 0x3d000000
         s_mov_b32 s35, 0x3c800000
         s_mov_b32 s36, 0x3a000000        ; 1/2048
         s_lshl_b32 s37, s6, 3            ; 8w
         s_lshl_b32 s38, s6, 4            ; 16w''')
    gen_dft_regs(A, 112, 16, 's37', 32, 0)
    gen_dft_regs(A, 128, 32, 's38', 64, 0)
    gen_dft_regs(A, 160, 32, 's38', 64, 8)
    A('s_waitcnt vmcnt(16)')
    for p in range(4): A(f'ds_write_b128 v10, v[{16+4*p}:{19+4*p}] offset:{F2_D0 + p*4096}')
    A('''v_and_b32 v8, 1, v4
         v_lshl_add_u32 v12, v6, 6, v3
         v_lshlrev_b32 v12, 3, v12
         v_lshl_add_u32 v12, v8, 2, v12
         v_lshl_add_u32 v13, v6, 5, v3
         v_lshlrev_b32 v13, 3, v13
         v_lshl_add_u32 v13, v8, 2, v13
         s_waitcnt lgkmcnt(0)
         s_barrier''')
    def stage32(src):
        for i in range(16): A(f'v_mov_b32 v{16+i}, 0')
        for sg in range(2):
            for st in range(8):
                for ct in range(4):
                    A(f'ds_read_b32 v{32+4*st+ct}, v12 offset:{src + (sg*8+st)*1024 + ct*128}')
            for st in range(8):
                A(f's_waitcnt lgkmcnt({min(15, 4*(7-st))})')
                for ct in range(4):
                    A(f'v_mfma_f32_16x16x4_f32 v[{16+4*ct}:{19+4*ct}], v{112+sg*8+st}, v{32+4*st+ct}, v[{16+4*ct}:{19+4*ct}]')
        A('s_nop 7\ns_nop 3')
    def stage64(src):
        for i in range(16): A(f'v_mov_b32 v{16+i}, 0')
        for sg in range(2):
            for st in range(16):
                for ct in range(2):
                    A(f'ds_read_b32 v{32+2*st+ct}, v13 offset:{src + (sg*16+st)*512 + ct*128}')
            for st in range(16):
                A(f's_waitcnt lgkmcnt({min(15, 2*(15-st))})')
                for rt in range(2):
                    for ct in range(2):
                        a = 16+4*(rt*2+ct)
                        A(f'v_mfma_f32_16x16x4_f32 v[{a}:{a+3}], v{128+32*rt+sg*16+st}, v{32+2*st+ct}, v[{a}:{a+3}]')
        A('s_nop 7\ns_nop 3')
    stage32(F2_D0)
    A('''v_lshl_add_u32 v64, v4, 1, s37       ; ka0
         v_lshlrev_b32 v65, 8, v3             ; n*256
         v_lshl_add_u32 v65, v64, 3, v65''')
    for ct in range(4):
        for h in range(2):
            A(f'''v_add_u32 v66, {16*ct}, v3
                  v_add_u32 v67, {h}, v64
                  v_mul_u32_u24 v66, v66, v67
                  v_cvt_f32_u32 v66, v66
                  v_mul_f32 v66, s36, v66''')
            cmul_tw(A, 16+4*ct+2*h, 17+4*ct+2*h, 66, 68)
        A(f'ds_write_b128 v65, v[{16+4*ct}:{19+4*ct}] offset:{F2_D1 + ct*16*256}')
    A('s_waitcnt lgkmcnt(0)\ns_barrier')
    stage64(F2_D1)
    A('s_waitcnt vmcnt(0)')
    A('''v_lshl_add_u32 v64, v4, 1, s38       ; 16w + 2g
         v_lshlrev_b32 v65, 8, v64
         v_lshl_add_u32 v65, v3, 3, v65''')
    for rt in range(2):
        for ct in range(2):
            for h in range(2):
                idx = (rt*2+ct)*2+h; re = 16+4*(rt*2+ct)+2*h; im = re+1
                A(f'''v_and_b32 v66, 0xffff0000, v{200+idx}
                      v_and_b32 v67, 0xffff0000, v{208+idx}
                      v_mul_f32 v68, v{re}, v66
                      v_mul_f32 v69, v{re}, v67
                      v_fma_f32 v68, -v{im}, v67, v68
                      v_fma_f32 v69, v{im}, v66, v69
                      v_mov_b32 v{re}, v68
                      v_xor_b32 v{im}, 0x80000000, v69
                      ds_write_b64 v65, v[{re}:{im}] offset:{F2_D0 + (8*rt+h)*256 + ct*128}''')
    A('s_waitcnt lgkmcnt(0)\ns_barrier')
    stage64(F2_D0)
    A('''v_lshlrev_b32 v65, 9, v3
         v_lshl_add_u32 v65, v64, 3, v65''')
    for rt in range(2):
        for ct in range(2):
            a = 16+4*(rt*2+ct)
            for h in range(2):
                A(f'''v_add_u32 v66, {16*ct}, v3
                      v_add_u32 v67, {8*rt+h}, v64
                      v_mul_u32_u24 v66, v66, v67
                      v_cvt_f32_u32 v66, v66
                      v_mul_f32 v66, s36, v66''')
                cmul_tw(A, a+2*h, a+2*h+1, 66, 68)
            A(f'ds_write_b128 v65, v[{a}:{a+3}] offset:{F2_D1 + ct*16*512 + rt*64}')
    A('s_waitcnt lgkmcnt(0)\ns_barrier')
    stage32(F2_D1)
    A('''v_lshl_add_u32 v64, v4, 1, s37
         v_lshlrev_b32 v65, 9, v64
         v_lshl_add_u32 v65, v3, 3, v65''')
    for ct in range(4):
        for h in range(2):
            r = 16+4*ct+2*h
            A(f'''v_xor_b32 v{r+1}, 0x80000000, v{r+1}
                  buffer_store_dwordx2 v[{r}:{r+1}], v65, s[16:19], s30 offen offset:{h*512 + ct*128} sc1''')

F3_LDS = 2560
def task_F3(A):
    lane_ids(A)
    A('''s_mul_i32 s30, s3, 52429
         s_lshr_b32 s30, s30, 18
         s_mul_i32 s31, s30, 5
         s_sub_u32 s31, s3, s31''')
    cos_table(A, 0)
    A('''v_lshrrev_b32 v5, 2, v3
         v_and_b32 v6, 3, v3
         v_lshl_add_u32 v5, v5, 3, v6
         s_lshl_b32 s7, s31, 7
         v_add_u32 v5, s7, v5
         v_lshrrev_b32 v6, 1, v4          ; kq>>1
         v_and_b32 v7, 1, v4
         v_mul_u32_u24 v7, 640, v7''')
    for dt in range(8):
        A(f'''v_add_u32 v8, {32*(dt>>1)+4*(dt&1)}, v5
              v_mul_u32_u24 v9, v8, v6
              v_lshl_add_u32 v{16+dt}, v9, 2, v7
              v_lshlrev_b32 v{24+dt}, 3, v8''')
        mod2560(A, 16+dt, 9, 1); mod2560(A, 24+dt, 9, 1)
    A(f'''s_lshl_b32 s7, s30, 6
          s_lshl_b32 s32, s6, 4
          s_add_u32 s7, s7, s32
          s_lshl_b32 s33, s7, 3
          s_add_u32 s33, s33, {X1T}
          v_lshlrev_b32 v14, 14, v6
          v_lshl_add_u32 v14, v3, 3, v14
          v_and_b32 v8, 1, v4
          v_lshl_add_u32 v14, v8, 2, v14
          v_add_u32 v14, s33, v14
          v_cmp_eq_u32 vcc, 0, v6
          v_mov_b32 v9, 1.0
          s_nop 0
          v_cndmask_b32 v12, v9, 0.5, vcc
          v_cndmask_b32 v13, 0, 0.5, vcc
          s_mov_b32 s34, 0''')
    for i in range(32): A(f'v_mov_b32 v{64+i}, 0')
    def bload(buf):
        for u in range(8):
            A(f'buffer_load_dword v{96+8*buf+u}, v14, s[16:19], s34 offen sc1\ns_add_u32 s34, s34, 32768')
    def aissue(buf):
        for dt in range(8):
            A(f'ds_read_b32 v{32+8*buf+dt}, v{16+dt}')
        for dt in range(8):
            A(f'v_add_u32 v{16+dt}, v{16+dt}, v{24+dt}')
            mod2560(A, 16+dt, 9, 1)
    bload(0)
    A('s_waitcnt lgkmcnt(0)\ns_barrier')
    aissue(0)
    A('s_mov_b32 s35, 0')
    A('s_waitcnt vmcnt(0)\nv_mul_f32 v96, v96, v12')
    L = A.newlabel('f3l'); A.label(L)
    for half in range(2):
        bload(half^1)
        for u in range(8):
            aissue((u+1)&1)
            A('s_waitcnt lgkmcnt(8)')
            for dt in range(8):
                A(f'v_mfma_f32_16x16x4_f32 v[{64+4*dt}:{67+4*dt}], v{32+8*(u&1)+dt}, v{96+8*half+u}, v[{64+4*dt}:{67+4*dt}]')
        A('s_waitcnt vmcnt(0)')
    A(f's_add_u32 s35, s35, 1\ns_cmp_lt_u32 s35, 10\ns_cbranch_scc1 {L}')
    A('''v_mul_f32 v97, 0.5, v96
         v_cmp_eq_u32 vcc, 0, v6
         s_nop 1
         v_cndmask_b32 v96, 0, v97, vcc
         s_waitcnt lgkmcnt(0)
         s_nop 1''')
    for dt in range(8):
        A(f'v_mfma_f32_16x16x4_f32 v[{64+4*dt}:{67+4*dt}], v{32+dt}, v96, v[{64+4*dt}:{67+4*dt}]')
    A('s_nop 7\ns_nop 3')
    import struct
    sc = struct.unpack('<I', struct.pack('<f', 2.0/(2048*640)))[0]
    A(f'''s_lshl_b32 s7, s30, 6
          s_add_u32 s7, s7, s32
          s_mul_i32 s7, s7, 1280
          s_lshl_b32 s33, s31, 8
          s_add_u32 s7, s7, s33
          s_add_u32 s7, s7, {ABUF}
          v_mul_u32_u24 v14, 1280, v3
          v_lshl_add_u32 v14, v4, 4, v14
          v_add_u32 v14, s7, v14
          s_mov_b32 s33, {sc}''')
    for pp in range(4):
        a0 = 64 + 8*pp
        for i in range(8): A(f'v_mul_f32 v{a0+i}, s33, v{a0+i}')
        A(f'''v_cvt_pk_bf16_f32 v16, v{a0}, v{a0+1}
              v_cvt_pk_bf16_f32 v17, v{a0+2}, v{a0+3}
              v_cvt_pk_bf16_f32 v18, v{a0+4}, v{a0+5}
              v_cvt_pk_bf16_f32 v19, v{a0+6}, v{a0+7}
              buffer_store_dwordx4 v[16:19], v14, s[16:19], 0 offen offset:{pp*64} sc1
              s_nop 1''')

if __name__ == '__main__':
    build([('f1_kernel', 192, F1_LDS, task_F1, (256, 256)),
           ('f2_kernel', 321, F2_LDS, task_F2, (256, 256)),
           ('f3_kernel', 160, F3_LDS, task_F3, (256, 256))], 't4.s')
    build([('f1_kernel', 192, F1_LDS, task_F1, (256, 256))], 't4a.s')
```

```python
import sys
from asmlib import *
from layout import *

HEADER = open('gated_mix__spectral_gfnet__memory_aug_recurrent_mem_tr__prompt.s.ref').read().split('; Override launch geometry')[0]

PTR = 40
def ptr(i): return PTR + 2*i
I_X, I_WR, I_WI, I_BX, I_MEM0, I_WQ, I_WK, I_WV, I_WO, I_SEG, I_GATE, I_OUT, I_DBG, I_WS = range(14)

def load_ptrs(A):
    A(f'''s_load_dwordx16 s[40:55], s[0:1], 0
          s_load_dwordx8 s[56:63], s[0:1], 64
          s_load_dwordx4 s[64:67], s[0:1], 96
          s_waitcnt lgkmcnt(0)''')
def srd(A, d, pi, nbytes):
    A(f'''s_mov_b32 s{d}, s{ptr(pi)}
          s_and_b32 s{d+1}, s{ptr(pi)+1}, 0xffff
          s_mov_b32 s{d+2}, {nbytes}
          s_mov_b32 s{d+3}, 0x00020000''')

def kernel_desc(name, vgpr=512, accum=256, sgpr=102):
    return f'''.amdhsa_kernel {name}
  .amdhsa_next_free_vgpr {vgpr}
  .amdhsa_next_free_sgpr {sgpr}
  .amdhsa_accum_offset {accum}
  .amdhsa_group_segment_fixed_size 0
  .amdhsa_kernarg_size 112
  .amdhsa_user_sgpr_count 2
  .amdhsa_user_sgpr_kernarg_segment_ptr 1
  .amdhsa_system_sgpr_workgroup_id_x 1
.end_amdhsa_kernel
'''

XS_STRIDE, WS_STRIDE = 144, 272
XS_BYTES, WS_BYTES_L = 128*XS_STRIDE, 64*WS_STRIDE
P_XS0 = 0
P_WS0 = 2*XS_BYTES
P_LDS = 2*XS_BYTES + 2*WS_BYTES_L

def gemm_loop(A, nchunks, swapped, xsrd, wsrd, s_xoff, s_woff, xchunk_step, wchunk_step, tag):
    xp, wp = A.xpass, A.wpass
    def issue_loads():
        for p in range(4):
            A(f'buffer_load_dwordx4 v[{128+4*p}:{131+4*p}], v{8+p}, {xsrd}, s{s_xoff} offen')
        for p in range(4):
            A(f'buffer_load_dwordx4 v[{144+4*p}:{147+4*p}], v{12+p}, {wsrd}, s{s_woff} offen')
        A(f's_add_u32 s{s_xoff}, s{s_xoff}, {xchunk_step}')
        A(f's_add_u32 s{s_woff}, s{s_woff}, {wchunk_step}')
    def write_lds(buf):
        for p in range(4):
            A(f'ds_write_b128 v3, v[{128+4*p}:{131+4*p}] offset:{P_XS0 + buf*XS_BYTES + p*32*XS_STRIDE}')
        for p in range(4):
            A(f'ds_write_b128 v4, v[{144+4*p}:{147+4*p}] offset:{buf*WS_BYTES_L + p*16*WS_STRIDE}')
    def read_frags(buf, kk, xb, wb):
        for mt in range(4):
            off = P_XS0 + buf*XS_BYTES + (32*(mt>>1) + 4*(mt&1))*XS_STRIDE + kk*64
            A(f'ds_read_b128 v[{xb+4*mt}:{xb+4*mt+3}], v5 offset:{off}')
        for nt in range(4):
            for hf in range(2):
                off = buf*WS_BYTES_L + (kk*32 + 4*hf)*WS_STRIDE + (32*(nt>>1) + 4*(nt&1))*2
                A(f'ds_read_b64_tr_b16 v[{wb+4*nt+2*hf}:{wb+4*nt+2*hf+1}], v6 offset:{off}')
    def mfmas(xb, wb):
        for nt in range(4):
            for mt in range(4):
                acc = 64 + 4*(nt*4+mt)
                a, b = (wb+4*nt, xb+4*mt) if not swapped else (xb+4*mt, wb+4*nt)
                A(f'v_mfma_f32_16x16x32_bf16 v[{acc}:{acc+3}], v[{a}:{a+3}], v[{b}:{b+3}], v[{acc}:{acc+3}]')
    for i in range(64): A(f'v_mov_b32 v{64+i}, 0')
    issue_loads()
    A('s_waitcnt vmcnt(0)')
    write_lds(0)
    A('s_waitcnt lgkmcnt(0)\ns_barrier')
    A(f's_mov_b32 s5, 0')
    Ltop = A.newlabel('gl'+tag)
    A.label(Ltop)
    for buf in range(2):
        issue_loads()
        read_frags(buf, 0, 16, 32)
        read_frags(buf, 1, 48, 160)
        A('s_waitcnt lgkmcnt(12)')
        mfmas(16, 32)
        A('s_waitcnt lgkmcnt(0)')
        mfmas(48, 160)
        A('s_waitcnt vmcnt(0)')
        write_lds(buf^1)
        A('s_waitcnt lgkmcnt(0)\ns_barrier')
    A(f's_add_u32 s5, s5, 2\ns_cmp_lt_u32 s5, {nchunks}\ns_cbranch_scc1 {Ltop}')

def gemm_setup_common(A):
    A('''v_and_b32 v7, 63, v0
         v_lshrrev_b32 v20, 6, v0
         s_nop 0
         v_readfirstlane_b32 s6, v20''')
    A(f'''v_lshrrev_b32 v20, 3, v0
          v_and_b32 v21, 7, v0
          v_mul_u32_u24 v3, {XS_STRIDE}, v20
          v_lshl_add_u32 v3, v21, 4, v3''')
    A(f'''v_lshrrev_b32 v22, 4, v0
          v_and_b32 v23, 15, v0
          v_mul_u32_u24 v4, {WS_STRIDE}, v22
          v_lshl_add_u32 v4, v23, 4, v4
          v_add_u32 v4, {P_WS0}, v4''')
    A(f'''v_and_b32 v24, 15, v7
          v_lshrrev_b32 v25, 4, v7
          v_lshrrev_b32 v26, 2, v24
          v_and_b32 v27, 3, v24
          v_lshl_add_u32 v28, v26, 3, v27
          s_lshr_b32 s7, s6, 1
          s_lshl_b32 s7, s7, 6
          v_add_u32 v28, s7, v28
          v_mul_u32_u24 v5, {XS_STRIDE}, v28
          v_lshl_add_u32 v5, v25, 4, v5''')
    A(f'''v_lshl_add_u32 v28, v25, 3, v26
          v_mul_u32_u24 v6, {WS_STRIDE}, v28
          s_and_b32 s7, s6, 1
          s_lshl_b32 s7, s7, 7
          v_lshl_add_u32 v6, v27, 4, v6
          v_add_u32 v6, s7, v6
          v_add_u32 v6, {P_WS0}, v6''')

def task_P(A):
    Lq = A.newlabel('Pq'); Ld = A.newlabel('Pd'); Lv = A.newlabel('Pv'); Lend = A.newlabel('Pend'); Lsel = A.newlabel('Psel')
    A(f'''s_cmp_lt_u32 s3, 1024
          s_cbranch_scc0 {Lq}
          s_lshr_b32 s30, s3, 6
          s_and_b32 s31, s3, 63
          s_add_u32 s31, s31, 32
          s_branch {Ld}''')
    A.label(Lq)
    A('''s_sub_u32 s31, s3, 1024
         s_lshr_b32 s30, s31, 5
         s_and_b32 s31, s31, 31''')
    A.label(Ld)
    A('''s_lshr_b32 s32, s31, 5      ; matrix 0/1/2
         s_and_b32 s33, s31, 31      ; head''')
    A(f'''s_cmp_eq_u32 s32, 0
          s_cselect_b32 s12, s{ptr(I_WQ)}, s{ptr(I_WK)}
          s_cselect_b32 s13, s{ptr(I_WQ)+1}, s{ptr(I_WK)+1}
          s_cmp_eq_u32 s32, 2
          s_cselect_b32 s12, s{ptr(I_WV)}, s12
          s_cselect_b32 s13, s{ptr(I_WV)+1}, s13
          s_and_b32 s13, s13, 0xffff
          s_mov_b32 s14, {640*4096*2}
          s_mov_b32 s15, 0x00020000''')
    gemm_setup_common(A)
    A(f'''s_lshl_b32 s7, s30, 7
          v_add_u32 v28, s7, v20
          v_mul_u32_u24 v8, 1280, v28
          v_lshl_add_u32 v8, v21, 4, v8
          v_add_u32 v9, {32*1280}, v8
          v_add_u32 v10, {64*1280}, v8
          v_add_u32 v11, {96*1280}, v8
          v_lshlrev_b32 v12, 13, v22
          v_lshl_add_u32 v12, v23, 4, v12
          s_lshl_b32 s7, s33, 8
          v_add_u32 v12, s7, v12
          v_add_u32 v13, {16*8192}, v12
          v_add_u32 v14, {32*8192}, v12
          v_add_u32 v15, {48*8192}, v12
          s_mov_b32 s34, 0
          s_mov_b32 s35, 0''')
    A.xpass = A.wpass = 0
    A(f's_cmp_eq_u32 s32, 2\ns_cbranch_scc1 {Lv}')
    gemm_loop(A, 10, False, 's[8:11]', 's[12:15]', 34, 35, 128, 64*8192, 'qk')
    A('s_nop 7\ns_nop 7')
    A('''v_and_b32 v24, 15, v7
         v_lshrrev_b32 v25, 4, v7
         v_lshrrev_b32 v26, 2, v24
         v_and_b32 v27, 3, v24''')
    A(f'''v_lshl_add_u32 v28, v26, 3, v27
          s_lshl_b32 s7, s30, 7
          s_lshr_b32 s36, s6, 1
          s_lshl_b32 s36, s36, 6
          s_add_u32 s7, s7, s36
          v_add_u32 v28, s7, v28
          v_lshlrev_b32 v28, 13, v28
          v_lshl_add_u32 v28, v25, 4, v28
          s_lshl_b32 s7, s33, 8
          s_and_b32 s36, s6, 1
          s_lshl_b32 s36, s36, 7
          s_add_u32 s7, s7, s36
          s_lshl_b32 s36, s32, 24
          s_add_u32 s7, s7, s36
          v_add_u32 v28, s7, v28''')
    for mt in range(4):
        A(f'v_add_u32 v29, {(32*(mt>>1)+4*(mt&1))*8192}, v28')
        for pp in range(2):
            a0 = 64 + 4*((2*pp)*4+mt); a1 = 64 + 4*((2*pp+1)*4+mt)
            A(f'''v_cvt_pk_bf16_f32 v16, v{a0}, v{a0+1}
                  v_cvt_pk_bf16_f32 v17, v{a0+2}, v{a0+3}
                  v_cvt_pk_bf16_f32 v18, v{a1}, v{a1+1}
                  v_cvt_pk_bf16_f32 v19, v{a1+2}, v{a1+3}
                  buffer_store_dwordx4 v[16:19], v29, s[16:19], 0 offen offset:{pp*64} sc1
                  s_nop 1''')
    A(f's_branch {Lend}')
    A.label(Lv)
    gemm_loop(A, 10, True, 's[8:11]', 's[12:15]', 34, 35, 128, 64*8192, 'v')
    A('s_nop 7\ns_nop 7')
    A('''v_and_b32 v24, 15, v7
         v_lshrrev_b32 v25, 4, v7
         v_lshrrev_b32 v26, 2, v24
         v_and_b32 v27, 3, v24''')
    A(f'''v_lshl_add_u32 v28, v26, 3, v27
          s_and_b32 s36, s6, 1
          s_lshl_b32 s36, s36, 6
          v_add_u32 v28, s36, v28
          v_lshlrev_b32 v28, 6, v28
          v_lshl_add_u32 v28, v25, 4, v28
          s_lshl_b32 s7, s30, 2
          s_lshr_b32 s36, s6, 1
          s_lshl_b32 s36, s36, 1
          s_add_u32 s7, s7, s36
          s_lshl_b32 s7, s7, 5
          s_add_u32 s7, s7, s33
          s_lshl_b32 s7, s7, 13
          s_add_u32 s7, s7, {VXT}
          v_add_u32 v28, s7, v28''')
    for ppx in range(2):
        A(f'v_add_u32 v29, {ppx*32*8192}, v28')
        for nt in range(4):
            a0 = 64 + 4*(nt*4+2*ppx); a1 = 64 + 4*(nt*4+2*ppx+1)
            A(f'''v_cvt_pk_bf16_f32 v16, v{a0}, v{a0+1}
                  v_cvt_pk_bf16_f32 v17, v{a0+2}, v{a0+3}
                  v_cvt_pk_bf16_f32 v18, v{a1}, v{a1+1}
                  v_cvt_pk_bf16_f32 v19, v{a1+2}, v{a1+3}
                  buffer_store_dwordx4 v[16:19], v29, s[16:19], 0 offen offset:{(32*(nt>>1)+4*(nt&1))*64} sc1
                  s_nop 1''')
    A.label(Lend)

def std_prologue(A, ntasks):
    Lx = A.newlabel('exit')
    A(f's_cmp_ge_u32 s2, {ntasks}\ns_cbranch_scc1 {Lx}')
    load_ptrs(A)
    srd(A, 8, I_X, 2048*1280)
    srd(A, 16, I_WS, WS_BYTES)
    srd(A, 20, I_OUT, 2048*1280)
    A('s_mov_b32 s3, s2')
    return Lx

def make_kernel(A, name, ntasks, body):
    A.raw(f'.globl {name}\n.p2align 8\n.type {name},@function\n{name}:')
    Lx = std_prologue(A, ntasks)
    body(A)
    A.label(Lx)
    A('s_endpgm')

def build(kernels, path):
    A = Asm()
    hdr = HEADER
    for (name, ntasks, lds, body, vg) in kernels:
        hdr += f'; @launch kernel={name} grid=({ntasks},1,1) block=(256,1,1) lds={lds}\n'
    A.raw('.amdgcn_target "amdgcn-amd-amdhsa--gfx950"\n.text')
    for (name, ntasks, lds, body, vg) in kernels:
        make_kernel(A, name, ntasks, body)
    txt = hdr + A.text() + '.section .rodata,"a"\n.p2align 6\n'
    for (name, ntasks, lds, body, vg) in kernels:
        txt += kernel_desc(name, *vg)
    open(path, 'w').write(txt)

if __name__ == '__main__':
    build([('proj_kernel', 1536, P_LDS, task_P, (256, 256))], 't1.s')
```

```python
MB = 1 << 20
QX = 0
KX = 16*MB
VXT = 32*MB
OX = 48*MB
KM = 64*MB
VMT = 68*MB
X1T = 72*MB
ABUF = 96*MB
PART = 100*MB
MEMB = 102*MB
FLAGS = 104*MB
WS_BYTES = 268435456
KA_X, KA_WR, KA_WI, KA_BX, KA_MEM0, KA_WQ, KA_WK, KA_WV, KA_WO, KA_SEG, KA_GATE, KA_OUT, KA_DBG, KA_WS = [8*i for i in range(14)]
GBUF = 99*MB
```

```python
from asmlib import *
from layout import *
from gen import *

def softmax12(A, S, t0):
    a,b,c,d,e,f = range(t0, t0+6)
    A(f'''v_max3_f32 v{a}, v{S}, v{S+1}, v{S+2}
         v_max3_f32 v{b}, v{S+3}, v{S+4}, v{S+5}
         v_max3_f32 v{c}, v{S+6}, v{S+7}, v{S+8}
         v_max3_f32 v{d}, v{S+9}, v{S+10}, v{S+11}
         v_max3_f32 v{a}, v{a}, v{b}, v{c}
         v_max_f32 v{a}, v{a}, v{d}
         v_mov_b32 v{b}, v{a}
         s_nop 1
         v_permlane32_swap_b32 v{a}, v{b}
         v_max_f32 v{a}, v{a}, v{b}
         v_mov_b32 v{b}, v{a}
         s_nop 1
         v_permlane16_swap_b32 v{a}, v{b}
         v_max_f32 v{a}, v{a}, v{b}''')
    for i in range(12):
        A(f'''v_sub_f32 v{S+i}, v{S+i}, v{a}
              v_mul_f32 v{S+i}, 0x3fb8aa3b, v{S+i}
              v_exp_f32 v{S+i}, v{S+i}''')
    A(f'''s_nop 0
         v_add_f32 v{a}, v{S}, v{S+1}
         v_add_f32 v{b}, v{S+2}, v{S+3}
         v_add_f32 v{c}, v{S+4}, v{S+5}
         v_add_f32 v{d}, v{S+6}, v{S+7}
         v_add_f32 v{e}, v{S+8}, v{S+9}
         v_add_f32 v{f}, v{S+10}, v{S+11}
         v_add_f32 v{a}, v{a}, v{b}
         v_add_f32 v{c}, v{c}, v{d}
         v_add_f32 v{e}, v{e}, v{f}
         v_add_f32 v{a}, v{a}, v{c}
         v_add_f32 v{a}, v{a}, v{e}
         v_mov_b32 v{b}, v{a}
         s_nop 1
         v_permlane32_swap_b32 v{a}, v{b}
         v_add_f32 v{a}, v{a}, v{b}
         v_mov_b32 v{b}, v{a}
         s_nop 1
         v_permlane16_swap_b32 v{a}, v{b}
         v_add_f32 v{a}, v{a}, v{b}
         v_rcp_f32 v{a}, v{a}
         s_nop 0''')
    for i in range(12): A(f'v_mul_f32 v{S+i}, v{S+i}, v{a}')

def round_scale12(A, S, t0):
    a,b,c = t0, t0+1, t0+2
    for i in range(0, 12, 2):
        A(f'''v_cvt_pk_bf16_f32 v{a}, v{S+i}, v{S+i+1}
              v_lshlrev_b32 v{b}, 16, v{a}
              v_and_b32 v{c}, 0xffff0000, v{a}
              v_mul_f32 v{b}, 0x3db504f3, v{b}
              v_mul_f32 v{c}, 0x3db504f3, v{c}
              v_cvt_pk_bf16_f32 v{a}, v{b}, v{c}
              v_lshlrev_b32 v{S+i}, 16, v{a}
              v_and_b32 v{S+i+1}, 0xffff0000, v{a}''')

def task_T(A):
    A('''v_and_b32 v1, 63, v0
         v_lshrrev_b32 v2, 6, v0
         s_nop 0
         v_readfirstlane_b32 s6, v2
         v_and_b32 v3, 15, v1
         v_lshrrev_b32 v4, 4, v1
         v_lshrrev_b32 v5, 2, v3
         v_and_b32 v6, 3, v3
         v_lshl_add_u32 v7, v5, 3, v6
         s_lshr_b32 s4, s3, 3                ; seg
         s_and_b32 s5, s3, 7
         s_lshl_b32 s5, s5, 2
         s_add_u32 s5, s5, s6                ; head''')
    A(f'''s_lshl_b32 s7, s4, 18
          s_lshl_b32 s30, s5, 8
          s_add_u32 s7, s7, s30               ; seg*32*8192 + h*256
          v_lshlrev_b32 v8, 13, v3
          v_lshl_add_u32 v8, v4, 4, v8
          v_add_u32 v8, s7, v8
          v_add_u32 v9, {16*8192}, v8
          v_lshlrev_b32 v10, 13, v7
          v_lshl_add_u32 v10, v4, 4, v10
          s_add_u32 s30, s7, {KX}
          v_add_u32 v10, s30, v10
          v_add_u32 v11, {4*8192}, v10''')
    for ks in range(4):
        A(f'buffer_load_dwordx4 v[{16+4*ks}:{19+4*ks}], v8, s[16:19], 0 offen offset:{ks*64} sc1')
        A(f'buffer_load_dwordx4 v[{32+4*ks}:{35+4*ks}], v9, s[16:19], 0 offen offset:{ks*64} sc1')
        A(f'buffer_load_dwordx4 v[{64+4*ks}:{67+4*ks}], v10, s[16:19], 0 offen offset:{ks*64} sc1')
        A(f'buffer_load_dwordx4 v[{80+4*ks}:{83+4*ks}], v11, s[16:19], 0 offen offset:{ks*64} sc1')
    A(f'''s_lshl_b32 s7, s4, 5
          s_add_u32 s7, s7, s5                ; seg*32+h
          s_lshl_b32 s30, s7, 11
          s_add_u32 s30, s30, {KM}
          v_and_b32 v12, 7, v3
          v_lshlrev_b32 v12, 8, v12
          v_lshl_add_u32 v12, v4, 4, v12
          v_add_u32 v12, s30, v12''')
    for ks in range(4):
        A(f'buffer_load_dwordx4 v[{48+4*ks}:{51+4*ks}], v12, s[16:19], 0 offen offset:{ks*64} sc1')
    A(f'''s_lshl_b32 s30, s7, 13
          s_add_u32 s30, s30, {VXT}
          v_lshlrev_b32 v13, 6, v7
          v_lshl_add_u32 v13, v4, 4, v13
          v_add_u32 v13, s30, v13
          v_add_u32 v14, 4096, v13
          s_lshl_b32 s30, s7, 11
          s_add_u32 s30, s30, {VMT}
          v_lshlrev_b32 v15, 4, v7
          v_and_b32 v2, 1, v4
          v_lshl_add_u32 v15, v2, 3, v15
          v_add_u32 v15, s30, v15''')
    for et in range(8):
        pp, t = et >> 1, et & 1
        off = (32*pp + 4*t)*64
        A(f'buffer_load_dwordx4 v[{96+4*et}:{99+4*et}], v{13 if off < 4096 else 14}, s[16:19], 0 offen offset:{off & 4095} sc1')
        A(f'buffer_load_dwordx2 v[{128+2*et}:{129+2*et}], v15, s[16:19], 0 offen offset:{(32*pp+4*t)*16} sc1')
    A(f'''s_lshl_b32 s7, s4, 18
          s_lshl_b32 s30, s5, 8
          s_add_u32 s7, s7, s30
          s_add_u32 s7, s7, {OX}
          v_lshlrev_b32 v8, 13, v3
          v_lshl_add_u32 v8, v4, 4, v8
          v_add_u32 v8, s7, v8
          s_mov_b32 s76, 0
          s_mov_b32 s77, -1
          v_mov_b32 v9, 0xff800000
          v_lshlrev_b32 v10, 3, v4            ; 8g
          s_waitcnt vmcnt(16)''')
    for qt in range(2):
        S = 144 + 12*qt
        for ks in range(4):
            q = 16 + 16*qt + 4*ks
            for t, kb in enumerate((48, 64, 80)):
                c = '0' if ks == 0 else f'v[{S+4*t}:{S+4*t+3}]'
                A(f'v_mfma_f32_16x16x32_bf16 v[{S+4*t}:{S+4*t+3}], v[{kb+4*ks}:{kb+4*ks+3}], v[{q}:{q+3}], {c}')
    A('s_nop 7')
    for qt in range(2):
        S = 144 + 12*qt
        round_scale12(A, S, 170)
        for i in range(4): A(f'v_cndmask_b32 v{S+i}, v{S+i}, v9, s[76:77]')
        for t in (1, 2):
            for r in range(4):
                c = 4*(t-1) + r - 16*qt
                A(f'''v_add_u32 v170, {c & 0xffffffff}, v10
                      v_cmp_gt_i32 vcc, v170, v3
                      s_nop 1
                      v_cndmask_b32 v{S+4*t+r}, v{S+4*t+r}, v9, vcc''')
        softmax12(A, S, 170)
        P = 176 + 6*qt
        A(f'''v_cvt_pk_bf16_f32 v{P}, v{S}, v{S+1}
              v_cvt_pk_bf16_f32 v{P+1}, v{S+2}, v{S+3}
              v_cvt_pk_bf16_f32 v{P+2}, v{S+4}, v{S+5}
              v_cvt_pk_bf16_f32 v{P+3}, v{S+6}, v{S+7}
              v_cvt_pk_bf16_f32 v{P+4}, v{S+8}, v{S+9}
              v_cvt_pk_bf16_f32 v{P+5}, v{S+10}, v{S+11}''')
    A('s_waitcnt vmcnt(0)\ns_nop 1')
    for qt in range(2):
        P = 176 + 6*qt
        for et in range(8):
            o = 16 + 32*qt + 4*et
            A(f'v_mfma_f32_16x16x32_bf16 v[{o}:{o+3}], v[{96+4*et}:{99+4*et}], v[{P+2}:{P+5}], 0')
        for et in range(8):
            o = 16 + 32*qt + 4*et
            A(f'v_mfma_f32_16x16x16_bf16 v[{o}:{o+3}], v[{128+2*et}:{129+2*et}], v[{P}:{P+1}], v[{o}:{o+3}]')
    A('s_nop 7')
    A(f'v_add_u32 v11, {16*8192}, v8')
    for qt in range(2):
        for pp in range(4):
            o0 = 16 + 32*qt + 8*pp; o1 = o0 + 4
            A(f'''v_cvt_pk_bf16_f32 v144, v{o0}, v{o0+1}
                  v_cvt_pk_bf16_f32 v145, v{o0+2}, v{o0+3}
                  v_cvt_pk_bf16_f32 v146, v{o1}, v{o1+1}
                  v_cvt_pk_bf16_f32 v147, v{o1+2}, v{o1+3}
                  buffer_store_dwordx4 v[144:147], v{8 if qt == 0 else 11}, s[16:19], 0 offen offset:{pp*64} sc1
                  s_nop 1''')

def task_G(A):
    srd(A, 24, I_GATE, 1280)
    A('''v_and_b32 v1, 63, v0
         v_lshrrev_b32 v2, 6, v0
         s_nop 0
         v_readfirstlane_b32 s6, v2
         v_lshlrev_b32 v3, 2, v1''')
    for k in range(5): A(f'buffer_load_dword v{8+k}, v3, s[24:27], 0 offen offset:{k*256}')
    A('''s_lshl_b32 s4, s3, 5
         s_lshl_b32 s5, s6, 3
         s_add_u32 s4, s4, s5
         s_mul_i32 s5, s4, 1280''')
    for r in range(8):
        for k in range(5): A(f'buffer_load_dword v{32+5*r+k}, v3, s[8:11], s5 offen offset:{k*256}')
        A('s_add_u32 s5, s5, 1280')
    A('s_waitcnt vmcnt(0)')
    for k in range(5):
        A(f'v_lshlrev_b32 v{16+2*k}, 16, v{8+k}\nv_and_b32 v{17+2*k}, 0xffff0000, v{8+k}')
    for r in range(8):
        A('v_mov_b32 v26, 0')
        for k in range(5):
            x = 32+5*r+k
            A(f'''v_lshlrev_b32 v27, 16, v{x}
                  v_and_b32 v28, 0xffff0000, v{x}
                  v_mul_f32 v27, v27, v{16+2*k}
                  v_mul_f32 v28, v28, v{17+2*k}
                  v_cvt_pk_bf16_f32 v27, v27, v28
                  v_lshlrev_b32 v28, 16, v27
                  v_and_b32 v27, 0xffff0000, v27
                  v_add_f32 v26, v26, v28
                  v_add_f32 v26, v26, v27''')
        A('''v_mov_b32 v27, v26
             s_nop 1
             v_permlane32_swap_b32 v26, v27
             v_add_f32 v26, v26, v27
             v_mov_b32 v27, v26
             s_nop 1
             v_permlane16_swap_b32 v26, v27
             v_add_f32 v26, v26, v27
             s_nop 1
             v_add_f32_dpp v26, v26, v26 row_ror:8 row_mask:0xf bank_mask:0xf
             s_nop 1
             v_add_f32_dpp v26, v26, v26 row_ror:4 row_mask:0xf bank_mask:0xf
             s_nop 1
             v_add_f32_dpp v26, v26, v26 row_ror:2 row_mask:0xf bank_mask:0xf
             s_nop 1
             v_add_f32_dpp v26, v26, v26 row_ror:1 row_mask:0xf bank_mask:0xf''')
        A(f'v_mov_b32 v{80+r}, v26')
    A('v_mov_b32 v26, v80')
    for r in range(1, 8):
        A(f'v_cmp_eq_u32 vcc, {r}, v1\ns_nop 1\nv_cndmask_b32 v26, v26, v{80+r}, vcc')
    A(f'''v_cvt_pk_bf16_f32 v26, v26, v26
          v_lshlrev_b32 v26, 16, v26
          v_mul_f32 v27, 0xbfb8aa3b, v26
          v_exp_f32 v27, v27
          s_nop 0
          v_add_f32 v27, 1.0, v27
          v_rcp_f32 v27, v27
          s_nop 0
          v_cvt_pk_bf16_f32 v27, v27, v27
          v_lshlrev_b32 v28, 16, v27            ; g
          v_sub_f32 v29, 1.0, v28
          v_cvt_pk_bf16_f32 v29, v29, v29
          v_lshlrev_b32 v29, 16, v29            ; 1-g
          s_lshl_b32 s5, s4, 3
          s_add_u32 s5, s5, {GBUF}
          v_lshlrev_b32 v30, 3, v1
          v_add_u32 v30, s5, v30
          v_cmp_gt_u32 vcc, 8, v1
          s_and_saveexec_b64 s[84:85], vcc
          buffer_store_dwordx2 v[28:29], v30, s[16:19], 0 offen sc1
          s_mov_b64 exec, s[84:85]''')

def task_O(A):
    srd(A, 12, I_WO, 4096*1280)
    A('''s_mul_i32 s30, s3, 52429
         s_lshr_b32 s30, s30, 18            ; rb = s3/5
         s_mul_i32 s31, s30, 5
         s_sub_u32 s31, s3, s31             ; ct''')
    gemm_setup_common(A)
    A(f'''s_lshl_b32 s7, s30, 7
          v_add_u32 v28, s7, v20
          v_lshlrev_b32 v8, 13, v28
          v_lshl_add_u32 v8, v21, 4, v8
          v_add_u32 v8, {OX}, v8
          v_add_u32 v9, {32*8192}, v8
          v_add_u32 v10, {64*8192}, v8
          v_add_u32 v11, {96*8192}, v8
          v_mul_u32_u24 v12, 1280, v22
          v_lshl_add_u32 v12, v23, 4, v12
          s_lshl_b32 s7, s31, 8
          v_add_u32 v12, s7, v12
          v_add_u32 v13, {16*1280}, v12
          v_add_u32 v14, {32*1280}, v12
          v_add_u32 v15, {48*1280}, v12
          s_mov_b32 s34, 0
          s_mov_b32 s35, 0''')
    A.xpass = A.wpass = 0
    gemm_loop(A, 64, False, 's[16:19]', 's[12:15]', 34, 35, 128, 64*1280, 'o')
    A('s_nop 7\ns_nop 7')
    A('''v_and_b32 v24, 15, v7
         v_lshrrev_b32 v25, 4, v7
         v_lshrrev_b32 v26, 2, v24
         v_and_b32 v27, 3, v24''')
    A(f'''v_lshl_add_u32 v28, v26, 3, v27
          s_lshl_b32 s7, s30, 7
          s_lshr_b32 s36, s6, 1
          s_lshl_b32 s36, s36, 6
          s_add_u32 s7, s7, s36
          v_add_u32 v28, s7, v28
          v_lshlrev_b32 v30, 3, v28
          v_add_u32 v30, {GBUF}, v30          ; g addr
          v_mul_u32_u24 v29, 1280, v28
          v_lshl_add_u32 v29, v25, 4, v29
          s_lshl_b32 s7, s31, 8
          s_and_b32 s36, s6, 1
          s_lshl_b32 s36, s36, 7
          s_add_u32 s7, s7, s36
          v_add_u32 v29, s7, v29
          s_mov_b32 s36, {ABUF}''')
    for mt in range(4):
        ro = 32*(mt>>1) + 4*(mt&1)
        A(f'buffer_load_dwordx2 v[{128+2*mt}:{129+2*mt}], v30, s[16:19], 0 offen offset:{ro*8} sc1')
        A(f'v_add_u32 v{136+mt}, {ro*1280}, v29')
        for pp in range(2):
            b = 144 + 8*mt + 4*pp
            A(f'buffer_load_dwordx4 v[{b}:{b+3}], v{136+mt}, s[16:19], s36 offen offset:{pp*64} sc1')
    A('s_waitcnt vmcnt(0)')
    for mt in range(4):
        for pp in range(2):
            b = 144 + 8*mt + 4*pp
            for j in range(4):
                a = 64 + 4*((2*pp + (j>>1))*4 + mt) + 2*(j&1)
                A(f'''v_cvt_pk_bf16_f32 v16, v{a}, v{a+1}          ; b rounded
                      v_lshlrev_b32 v17, 16, v16
                      v_and_b32 v18, 0xffff0000, v16
                      v_mul_f32 v17, v17, v{129+2*mt}
                      v_mul_f32 v18, v18, v{129+2*mt}
                      v_cvt_pk_bf16_f32 v16, v17, v18               ; (1-g)*b
                      v_lshlrev_b32 v17, 16, v{b+j}
                      v_and_b32 v18, 0xffff0000, v{b+j}
                      v_mul_f32 v17, v17, v{128+2*mt}
                      v_mul_f32 v18, v18, v{128+2*mt}
                      v_cvt_pk_bf16_f32 v19, v17, v18               ; g*a
                      v_lshlrev_b32 v17, 16, v16
                      v_and_b32 v18, 0xffff0000, v16
                      v_lshlrev_b32 v20, 16, v19
                      v_and_b32 v21, 0xffff0000, v19
                      v_add_f32 v17, v17, v20
                      v_add_f32 v18, v18, v21
                      v_cvt_pk_bf16_f32 v{32+j}, v17, v18''')
            A(f'buffer_store_dwordx4 v[32:35], v{136+mt}, s[20:23], 0 offen offset:{pp*64}\ns_nop 1')

if __name__ == '__main__':
    from chain import *
    build([('init_kernel', 64, 0, task_init, (256, 256)),
           ('gate_kernel', 64, 0, task_G, (256, 256)),
           ('proj_kernel', 1536, P_LDS, task_P, (256, 256)),
           ('chain_kernel', 64, C_LDS, task_chain, (512, 256)),
           ('attn_kernel', 512, 0, task_T, (256, 256)),
           ('oproj_kernel', 80, P_LDS, task_O, (256, 256))], 't3.s')
```

```python
from gen import *
from chain import *
from post import *
from fft import *
K = 'gated_mix__spectral_gfnet__memory_aug_recurrent_mem_tr__prompt.s'
build([('init_kernel', 64, 0, task_init, (256, 256)),
       ('gate_kernel', 64, 0, task_G, (256, 256)),
       ('proj_kernel', 1536, P_LDS, task_P, (256, 256)),
       ('f1_kernel', 192, F1_LDS, task_F1, (256, 256)),
       ('f2_kernel', 321, F2_LDS, task_F2, (256, 256)),
       ('f3_kernel', 160, F3_LDS, task_F3, (256, 256)),
       ('chain_kernel', 64, C_LDS, task_chain, (512, 256)),
       ('attn_kernel', 512, 0, task_T, (256, 256)),
       ('oproj_kernel', 80, P_LDS, task_O, (256, 256))], K)
```

```python
from asmlib import *
from layout import *
from gen import *
from post import softmax12, round_scale12

MSTR   = 1344
C_MEM  = 0
C_SC   = 12160
C_VM   = C_SC + 12288
C_RD   = C_VM + 2048
C_WO   = C_RD + 2048
C_STG  = C_WO + 81920
SSTR   = 656
C_LDS  = C_STG + 2*32*SSTR

def wreg(f):
    return ('a', 4*f) if f < 64 else ('v', 192 + 4*(f-64))
def worg(T, kk):
    return 112 + 4*(2*T+kk)
D1, D2, D3 = 0, 0, 0
ADAPT = None
def dsleep(A, sreg):
    L = A.newlabel('dsl'); A(f's_mov_b32 s7, s{sreg}'); A.label(L); A(f's_sleep 1\ns_sub_u32 s7, s7, 1\ns_cmp_gt_i32 s7, 0\ns_cbranch_scc1 {L}')
def dadapt(A, sreg):
    dec, inc = ADAPT
    A(f'''s_cmp_eq_u32 s90, 1
          s_cselect_b32 s7, {-dec & 0xffffffff}, {inc}
          s_add_i32 s{sreg}, s{sreg}, s7
          s_max_i32 s{sreg}, s{sreg}, 1''')
def wr4(f):
    t, b = wreg(f); return f'{t}[{b}:{b+3}]'
def wr2(f, hf):
    t, b = wreg(f); return f'{t}[{b+2*hf}:{b+2*hf+1}]'

PROF = False
def stamp(A, i):
    if TRACE:
        A(f'''s_memrealtime s[100:101]
              s_waitcnt lgkmcnt(0)
              v_mov_b32 v102, s100
              s_lshl_b32 s7, s3, 2
              s_add_u32 s7, s7, s6
              s_lshl_b32 s7, s7, 6
              s_add_u32 s7, s7, s79
              s_lshl_b32 s7, s7, 5
              s_add_u32 s7, s7, {TRC + (1<<20) + 4*i}
              v_mov_b32 v103, s7
              buffer_store_dword v102, v103, s[16:19], 0 offen''')
        return
    if not PROF: return
    A(f'''s_memtime s[98:99]
          s_waitcnt lgkmcnt(0)
          s_sub_u32 s100, s98, s91
          s_mov_b32 s91, s98
          s_add_u32 s{92+i}, s{92+i}, s100''')

FUSED = False
TRACE = False
TRC = 110*MB
CKV, CQ, CF1, CF2, CF3, CG_, CCH, CT, CPROG = 0, 16, 32, 33, 34, 66, 67, 131, 200
def cnt_addr(i): return FLAGS + 64*i

def task_chain(A, standalone=True):
    if FUSED:
        A(f'''v_lshlrev_b32 v1, 4, v0
              v_mov_b32 v4, 0
              v_mov_b32 v5, 0
              v_mov_b32 v6, 0
              v_mov_b32 v7, 0
              v_mov_b32 v8, -1
              v_mov_b32 v9, -1
              v_mov_b32 v10, -1
              v_mov_b32 v11, -1
              s_mul_i32 s4, s3, 20480
              s_add_u32 s4, s4, {PART}''')
        for p in range(5):
            A(f'buffer_store_dwordx4 v[4:7], v1, s[16:19], s4 offen sc1\ns_add_u32 s4, s4, 4096')
        A(f'''s_mul_i32 s4, s3, 20480
              s_add_u32 s4, s4, {MEMB}''')
        for p in range(5):
            A(f'buffer_store_dwordx4 v[8:11], v1, s[16:19], s4 offen sc1\ns_add_u32 s4, s4, 4096')
        A(f'''
              s_lshl_b32 s4, s3, 12
              s_add_u32 s4, s4, {FLAGS}
              s_cmp_lt_u32 s3, 5
              s_cselect_b32 s4, s4, 0x7ff00000
              buffer_store_dwordx4 v[4:7], v1, s[16:19], s4 offen sc1
              s_waitcnt vmcnt(0)
              s_barrier
              v_mov_b32 v4, 1
              v_mov_b32 v5, 128
              v_cmp_eq_u32 vcc, 0, v0
              s_and_saveexec_b64 s[84:85], vcc
              buffer_atomic_add v4, v5, s[96:99], 0 offen
              s_mov_b64 exec, s[84:85]''')
    srd(A, 12, I_WQ, 640*8192); srd(A, 24, I_WK, 640*8192); srd(A, 28, I_WV, 640*8192); srd(A, 68, I_WO, 4096*1280); srd(A, 72, I_MEM0, 10240)
    A('''s_lshr_b32 s4, s3, 1          ; head
         s_and_b32 s5, s3, 1           ; half j
         v_and_b32 v1, 63, v0
         v_lshrrev_b32 v2, 6, v0
         s_nop 0
         v_readfirstlane_b32 s6, v2    ; wave
         v_and_b32 v3, 15, v1          ; rho / i
         v_lshrrev_b32 v4, 4, v1       ; g
         v_lshrrev_b32 v5, 2, v3       ; rho>>2
         v_and_b32 v6, 3, v3           ; rho&3''')
    A(f'''v_lshrrev_b32 v8, 4, v0
          v_and_b32 v9, 15, v0
          v_lshlrev_b32 v10, 13, v8
          v_lshl_add_u32 v10, v9, 4, v10
          s_lshl_b32 s7, s4, 8
          v_add_u32 v10, s7, v10          ; q/k rows 0..15
          v_add_u32 v11, {16*8192}, v10   ; rows 16..31
          v_mul_u32_u24 v12, {SSTR}, v8
          v_lshl_add_u32 v12, v9, 4, v12
          v_add_u32 v12, {C_STG}, v12
          v_lshrrev_b32 v8, 3, v0
          v_and_b32 v9, 7, v0
          v_lshlrev_b32 v13, 13, v8
          v_lshl_add_u32 v13, v9, 4, v13
          s_lshl_b32 s37, s5, 7
          s_add_u32 s7, s7, s37
          v_add_u32 v13, s7, v13          ; v global
          v_mul_u32_u24 v14, {SSTR}, v8
          v_lshl_add_u32 v14, v9, 4, v14
          v_add_u32 v14, {C_STG+512}, v14''')
    A(f'''v_lshl_add_u32 v8, v4, 3, v5
          v_mul_u32_u24 v15, {SSTR}, v8
          v_lshl_add_u32 v15, v6, 4, v15       ; + 8c*2
          v_add_u32 v15, {C_STG}, v15
          s_lshl_b32 s7, s6, 6                 ; 32w*2
          v_add_u32 v16, s7, v15               ; q/k base
          s_lshr_b32 s7, s6, 1
          s_lshl_b32 s7, s7, 6                 ; 32(w>>1)*2
          s_and_b32 s37, s6, 1
          s_lshl_b32 s37, s37, 3               ; 4(w&1)*2
          s_add_u32 s7, s7, s37
          s_add_u32 s7, s7, 512
          v_add_u32 v17, s7, v15               ; v base''')
    def wl_issue(kk):
        A(f's_mov_b32 s38, {kk*32*8192}')
        A(f'''buffer_load_dwordx4 v[20:23], v10, s[12:15], s38 offen
              buffer_load_dwordx4 v[24:27], v11, s[12:15], s38 offen
              buffer_load_dwordx4 v[28:31], v10, s[24:27], s38 offen
              buffer_load_dwordx4 v[32:35], v11, s[24:27], s38 offen
              buffer_load_dwordx4 v[36:39], v13, s[28:31], s38 offen''')
    def wl_write(buf):
        o = buf*32*SSTR
        A(f'''ds_write_b128 v12, v[20:23] offset:{o}
              ds_write_b128 v12, v[24:27] offset:{o+16*SSTR}
              ds_write_b128 v12, v[28:31] offset:{o+256}
              ds_write_b128 v12, v[32:35] offset:{o+16*SSTR+256}
              ds_write_b128 v14, v[36:39] offset:{o}''')
    def wl_read(kk, buf):
        o = buf*32*SSTR
        for tile in range(4):
            for hf in range(2):
                off = o + 4*hf*SSTR + (tile>>1)*256 + (tile&1)*8
                A(f'ds_read_b64_tr_b16 {wr2(tile*20+kk, hf)}, v16 offset:{off}')
        for hf in range(2):
            A(f'ds_read_b64_tr_b16 v[{40+2*hf}:{41+2*hf}], v17 offset:{o+4*hf*SSTR}')
        A(f's_waitcnt lgkmcnt(0)\nds_write_b128 v18, v[40:43] offset:{kk*1024}')
    A(f'''s_mul_i32 s7, s6, 20480
          s_add_u32 s7, s7, {C_WO}
          v_lshlrev_b32 v18, 4, v1
          v_add_u32 v18, s7, v18''')
    wl_issue(0)
    for kk in range(20):
        A('s_waitcnt vmcnt(0)')
        wl_write(kk&1)
        if kk < 19: wl_issue(kk+1)
        A('s_waitcnt lgkmcnt(0)\ns_barrier')
        wl_read(kk, kk&1)
    A('s_waitcnt lgkmcnt(0)\ns_barrier')
    WSTR = 1296
    A(f'''s_lshl_b32 s7, s4, 7
          s_lshl_b32 s37, s5, 6
          s_add_u32 s7, s7, s37               ; h*128 + 64j
          s_lshl_b32 s37, s6, 3
          s_add_u32 s7, s7, s37               ; + 8w
          s_mul_i32 s7, s7, 1280
          v_lshlrev_b32 v10, 4, v1
          v_add_u32 v10, s7, v10              ; global x4
          v_lshlrev_b32 v11, 2, v1
          v_add_u32 v11, s7, v11
          v_add_u32 v11, 1024, v11            ; global x1
          s_mul_i32 s7, s37, {WSTR}
          s_add_u32 s7, s7, {C_STG}
          v_lshlrev_b32 v12, 4, v1
          v_add_u32 v12, s7, v12              ; lds x4
          v_lshlrev_b32 v13, 2, v1
          v_add_u32 v13, s7, v13
          v_add_u32 v13, 1024, v13            ; lds x1
          v_lshl_add_u32 v8, v4, 3, v5
          v_mul_u32_u24 v15, {WSTR}, v8
          v_lshl_add_u32 v15, v6, 3, v15      ; + 4c*2
          s_mul_i32 s7, s6, 320
          s_add_u32 s7, s7, {C_STG}
          v_add_u32 v15, s7, v15
          s_mul_i32 s7, s6, 20480
          s_add_u32 s7, s7, {C_WO}
          v_lshlrev_b32 v16, 4, v1
          v_add_u32 v16, s7, v16''')
    for kk in range(2):
        for half in range(2):
            for r in range(4):
                rr = half*4 + r
                A(f's_mov_b32 s38, {(kk*32+rr)*1280}')
                A(f'buffer_load_dwordx4 v[{20+4*r}:{23+4*r}], v10, s[68:71], s38 offen')
                A(f'buffer_load_dword v{36+r}, v11, s[68:71], s38 offen')
            A('s_waitcnt vmcnt(0)')
            for r in range(4):
                rr = half*4 + r
                A(f'ds_write_b128 v12, v[{20+4*r}:{23+4*r}] offset:{rr*WSTR}')
                A(f'ds_write_b32 v13, v{36+r} offset:{rr*WSTR}')
        A('s_waitcnt lgkmcnt(0)\ns_barrier')
        for T in range(10):
            for hf in range(2):
                A(f'ds_read_b64_tr_b16 v[{worg(T,kk)+2*hf}:{worg(T,kk)+2*hf+1}], v15 offset:{4*hf*WSTR + T*32}')
        A('s_waitcnt lgkmcnt(0)\ns_barrier')
    A('v_mov_b32 v2, v16')
    A(f'''v_min_u32 v7, 8, v3
          v_mul_u32_u24 v7, {MSTR}, v7
          v_lshl_add_u32 v7, v4, 4, v7
          v_add_u32 v7, {C_MEM}, v7''')
    A(f'''v_lshl_add_u32 v8, v5, 3, v6
          v_lshlrev_b32 v8, 13, v8
          v_lshl_add_u32 v8, v4, 4, v8
          s_lshl_b32 s7, s4, 8
          s_lshl_b32 s37, s6, 6
          s_add_u32 s7, s7, s37
          s_add_u32 s7, s7, {KX}
          v_add_u32 v8, s7, v8''')
    A(f'''v_lshl_add_u32 v9, v5, 3, v6
          v_lshlrev_b32 v9, 6, v9
          v_lshl_add_u32 v9, v4, 4, v9
          s_lshl_b32 s7, s4, 13
          s_lshl_b32 s37, s5, 12
          s_add_u32 s7, s7, s37
          s_add_u32 s7, s7, {VXT}
          v_add_u32 v9, s7, v9''')
    A(f'''v_and_b32 v20, 7, v3
          v_lshl_add_u32 v10, v4, 3, v20
          v_lshlrev_b32 v10, 4, v10
          v_lshrrev_b32 v20, 3, v3
          v_lshl_add_u32 v10, v20, 9, v10
          s_mul_i32 s7, s3, 20480
          s_mul_i32 s37, s6, 5120
          s_add_u32 s7, s7, s37
          s_add_u32 s7, s7, {PART}
          v_add_u32 v10, s7, v10''')
    A(f'''v_lshrrev_b32 v11, 3, v1
          v_mul_u32_u24 v11, 20480, v11
          v_and_b32 v20, 7, v1
          v_lshl_add_u32 v11, v20, 4, v11
          s_lshl_b32 s7, s6, 7
          s_lshl_b32 s37, s3, 9
          s_add_u32 s7, s7, s37
          s_add_u32 s7, s7, {PART}
          v_add_u32 v11, s7, v11''')
    A(f'''v_lshlrev_b32 v12, 3, v1
          s_lshl_b32 s7, s3, 9
          s_lshl_b32 s37, s6, 7
          s_add_u32 s7, s7, s37
          s_add_u32 s7, s7, {MEMB}
          v_add_u32 v12, s7, v12
          v_cmp_lt_u32 vcc, 7, v1
          v_mov_b32 v20, 0x7ff00000
          s_nop 1
          v_cndmask_b32 v12, v12, v20, vcc''')
    A(f'''v_lshrrev_b32 v13, 3, v0
          v_lshlrev_b32 v13, 7, v13
          v_and_b32 v20, 7, v0
          v_lshl_add_u32 v13, v20, 3, v13
          v_add_u32 v13, {MEMB}, v13''')
    for k in range(5):
        A(f'''v_add_u32 v20, {k*256}, v0
              v_mul_u32_u24 v21, 52429, v20
              v_lshrrev_b32 v21, 23, v21          ; i = idx/160
              v_mul_u32_u24 v22, 160, v21
              v_sub_u32 v22, v20, v22
              v_mul_u32_u24 v21, {MSTR}, v21
              v_lshl_add_u32 v21, v22, 3, v21
              v_add_u32 v{96+k}, {C_MEM}, v21
              v_and_b32 v21, 7, v20
              v_lshrrev_b32 v22, 3, v20
              v_mul_u32_u24 v21, {MSTR}, v21
              v_lshl_add_u32 v21, v22, 3, v21
              v_add_u32 v{104+k}, {C_MEM}, v21''')
    A(f'''v_lshlrev_b32 v14, 8, v3
          v_lshl_add_u32 v14, v4, 4, v14
          s_lshl_b32 s7, s4, 11
          s_lshl_b32 s37, s6, 6
          s_add_u32 s7, s7, s37
          s_add_u32 s7, s7, {KM}
          s_cmp_eq_u32 s5, 0
          s_cselect_b32 s7, s7, 0x7ff00000
          v_add_u32 v14, s7, v14
          v_cmp_lt_u32 vcc, 7, v3
          v_mov_b32 v20, 0x7ff00000
          s_nop 1
          v_cndmask_b32 v14, v14, v20, vcc''')
    A(f'''v_lshl_add_u32 v15, v5, 3, v6
          v_lshlrev_b32 v15, 4, v15
          v_lshl_add_u32 v15, v4, 3, v15
          s_lshl_b32 s7, s4, 11
          s_lshl_b32 s37, s5, 10
          s_add_u32 s7, s7, s37
          s_lshr_b32 s37, s6, 1
          s_lshl_b32 s37, s37, 9
          s_add_u32 s7, s7, s37
          s_and_b32 s37, s6, 1
          s_lshl_b32 s37, s37, 6
          s_add_u32 s7, s7, s37
          s_add_u32 s7, s7, {VMT}
          v_add_u32 v15, s7, v15
          v_cmp_lt_u32 vcc, 1, v4
          v_mov_b32 v20, 0x7ff00000
          s_nop 1
          v_cndmask_b32 v15, v15, v20, vcc''')
    A(f'''v_lshlrev_b32 v110, 4, v1
          s_mul_i32 s7, s6, 3072
          s_add_u32 s7, s7, {C_SC}
          v_add_u32 v109, s7, v110
          v_mov_b32 v111, 1
          s_mov_b32 s76, 0
          s_mov_b32 s77, -1
          s_mov_b32 s78, 0xfffffffe
          s_mov_b32 s79, 0              ; step
          s_mov_b32 s80, 0              ; seg*32*8192
          s_mov_b32 s81, {4*8192}       ; seg*32*8192 + 4*8192
          s_mov_b32 s82, 0              ; seg*65536
          s_mov_b32 s83, 0              ; step*10240
          s_mov_b32 s87, 4096
          s_mov_b32 s88, 8192
          s_mov_b32 s86, 4096
          s_mov_b32 s89, 8192''')
    if ADAPT:
        A(f'''s_mov_b32 s93, {2*D1}
              s_cmp_lt_u32 s3, 40
              s_cselect_b32 s94, {2*D2}, {2*D3}''')
    A(f'''v_mov_b32 v20, 0
          v_mov_b32 v21, 0
          v_lshlrev_b32 v22, 3, v0
          v_add_u32 v22, {C_MEM + 8*MSTR}, v22
          v_cmp_gt_u32 vcc, 160, v0
          s_and_saveexec_b64 s[84:85], vcc
          ds_write_b64 v22, v[20:21]
          s_mov_b64 exec, s[84:85]
          v_lshlrev_b32 v22, 3, v0''')
    for k in range(5):
        A(f'buffer_load_dwordx2 v[{24+2*k}:{25+2*k}], v22, s[72:75], {["0","0","s86","s86","s89"][k]} offen offset:{(k&1)*2048}')
    def kv_prefetch():
        A(f'''buffer_load_dwordx4 v[56:59], v8, s[16:19], s80 offen sc1
              buffer_load_dwordx4 v[60:63], v8, s[16:19], s81 offen sc1''')
        for pt in range(4):
            A(f'buffer_load_dwordx4 v[{64+4*pt}:{67+4*pt}], v9, s[16:19], s80 offen offset:{(32*(pt>>1)+4*(pt&1))*64} sc1')
    Lend = A.newlabel('cend')
    if FUSED:
        A('s_waitcnt vmcnt(0)')
        for (srdn, off, tgt) in (('s[96:99]', 128, 64), ('s[16:19]', cnt_addr(CKV), 64)):
            Lw = A.newlabel('cw')
            A(f'v_mov_b32 v40, {off}\ns_mov_b32 s90, 0')
            A.label(Lw)
            A(f'''s_add_u32 s90, s90, 1
                  s_cmp_gt_u32 s90, 400000
                  s_cbranch_scc1 {Lend}
                  buffer_load_dword v41, v40, {srdn}, 0 offen sc1
                  s_waitcnt vmcnt(0)
                  v_readfirstlane_b32 s7, v41
                  s_cmp_ge_u32 s7, {tgt}
                  s_cbranch_scc0 {Lw}''')
    kv_prefetch()
    A('s_waitcnt vmcnt(6)')
    for k in range(5):
        A(f'ds_write_b64 v{96+k}, v[{24+2*k}:{25+2*k}]')
    Ltop = A.newlabel('ctop'); Lnored = A.newlabel('cnored'); Lfin = A.newlabel('cfin')
    if PROF:
        for i in range(6): A(f's_mov_b32 s{92+i}, 0')
        A('s_memtime s[98:99]\ns_waitcnt lgkmcnt(0)\ns_mov_b32 s91, s98')
    A.label(Ltop)
    A('s_waitcnt lgkmcnt(0)\ns_barrier')
    if FUSED:
        Lnp0 = A.newlabel('nprog')
        A(f'''s_or_b32 s7, s3, s6
              s_cmp_lg_u32 s7, 0
              s_cbranch_scc1 {Lnp0}
              v_mov_b32 v54, s79
              v_mov_b32 v55, {cnt_addr(CPROG)}
              buffer_store_dword v54, v55, s[16:19], 0 offen sc1''')
        A.label(Lnp0)
    if TRACE:
        A(f'''s_memrealtime s[100:101]
              s_waitcnt lgkmcnt(0)
              v_mov_b32 v54, s100
              s_lshl_b32 s7, s79, 2
              s_lshl_b32 s101, s3, 8
              s_add_u32 s7, s7, s101
              s_add_u32 s7, s7, {TRC}
              v_mov_b32 v55, s7
              buffer_store_dword v54, v55, s[16:19], 0 offen''')
    stamp(A, 5)
    if FUSED:
        A(f'''s_add_u32 s7, s79, 1
              s_lshr_b32 s7, s7, 2
              s_lshl_b32 s7, s7, 6
              s_add_u32 s91, s7, {cnt_addr(CKV)}
              v_mov_b32 v54, s91
              buffer_load_dword v55, v54, s[16:19], 0 offen sc1''')
    for i in range(20): A(f'v_mov_b32 v{16+i}, 0')
    for kk in range(2):
        A(f'ds_read_b128 v[{36+4*kk}:{39+4*kk}], v7 offset:{kk*64}\nds_read_b128 v[{80+4*kk}:{83+4*kk}], v2 offset:{kk*1024}')
    for kk in range(20):
        cur = 4*(kk%3); nxt = 4*((kk+2)%3)
        if kk < 18:
            A(f'ds_read_b128 v[{36+nxt}:{39+nxt}], v7 offset:{(kk+2)*64}')
            A(f'ds_read_b128 v[{80+nxt}:{83+nxt}], v2 offset:{(kk+2)*1024}')
            A('s_waitcnt lgkmcnt(4)')
        else:
            A(f's_waitcnt lgkmcnt({2*(19-kk)})')
        for tile in range(4):
            A(f'v_mfma_f32_16x16x32_bf16 v[{16+4*tile}:{19+4*tile}], {wr4(tile*20+kk)}, v[{36+cur}:{39+cur}], v[{16+4*tile}:{19+4*tile}]')
        A(f'v_mfma_f32_16x16x32_bf16 v[32:35], v[{36+cur}:{39+cur}], v[{80+cur}:{83+cur}], v[32:35]')
    A('s_nop 3')
    stamp(A, 0)
    A('''v_cvt_pk_bf16_f32 v48, v24, v25
         v_cvt_pk_bf16_f32 v49, v26, v27
         v_cvt_pk_bf16_f32 v44, v16, v17
         v_cvt_pk_bf16_f32 v45, v18, v19
         v_cvt_pk_bf16_f32 v46, v20, v21
         v_cvt_pk_bf16_f32 v47, v22, v23
         v_cvt_pk_bf16_f32 v50, v28, v29
         v_cvt_pk_bf16_f32 v51, v30, v31
         v_cvt_pk_bf16_f32 v52, v32, v33
         v_cvt_pk_bf16_f32 v53, v34, v35''')
    A('''buffer_store_dwordx4 v[48:51], v14, s[16:19], s82 offen sc1
         buffer_store_dwordx2 v[52:53], v15, s[16:19], s82 offen sc1''')
    A(f's_cmp_eq_u32 s79, 63\ns_cbranch_scc1 {Lfin}')
    A(f'''s_lshl_b32 s7, s6, 9
          v_lshlrev_b32 v54, 3, v1
          v_add_u32 v54, s7, v54
          ds_write_b64 v54, v[52:53] offset:{C_VM}''')
    A('s_waitcnt vmcnt(2)')
    if FUSED: A('v_readfirstlane_b32 s92, v55')
    A('''v_mfma_f32_16x16x32_bf16 v[80:83], v[48:51], v[44:47], 0
         v_mfma_f32_16x16x32_bf16 v[84:87], v[56:59], v[44:47], 0
         v_mfma_f32_16x16x32_bf16 v[88:91], v[60:63], v[44:47], 0
         s_nop 5
         ds_write_b128 v109, v[80:83]
         ds_write_b128 v109, v[84:87] offset:1024
         ds_write_b128 v109, v[88:91] offset:2048
         s_waitcnt lgkmcnt(0)
         s_barrier''')
    stamp(A, 1)
    for w in range(4):
        for t in range(3):
            A(f'ds_read_b128 v[{16+12*w+4*t}:{19+12*w+4*t}], v110 offset:{C_SC + w*3072 + t*1024}')
    A('s_waitcnt lgkmcnt(6)')
    for i in range(0, 12, 2): A(f'v_pk_add_f32 v[{80+i}:{81+i}], v[{16+i}:{17+i}], v[{28+i}:{29+i}]')
    A('s_waitcnt lgkmcnt(0)')
    for i in range(0, 12, 2): A(f'v_pk_add_f32 v[{40+i}:{41+i}], v[{40+i}:{41+i}], v[{52+i}:{53+i}]')
    for i in range(0, 12, 2): A(f'v_pk_add_f32 v[{80+i}:{81+i}], v[{80+i}:{81+i}], v[{40+i}:{41+i}]')
    A('v_lshlrev_b32 v54, 3, v1')
    for pt in range(4):
        A(f'ds_read_b64 v[{16+2*pt}:{17+2*pt}], v54 offset:{C_VM + pt*512}')
    round_scale12(A, 80, 92)
    A('v_mov_b32 v92, 0xff800000')
    for i in range(4): A(f'v_cndmask_b32 v{80+i}, v{80+i}, v92, s[76:77]')
    softmax12(A, 80, 92)
    A('''v_cvt_pk_bf16_f32 v48, v80, v81
         v_cvt_pk_bf16_f32 v49, v82, v83
         v_cvt_pk_bf16_f32 v44, v84, v85
         v_cvt_pk_bf16_f32 v45, v86, v87
         v_cvt_pk_bf16_f32 v46, v88, v89
         v_cvt_pk_bf16_f32 v47, v90, v91
         s_waitcnt lgkmcnt(0)
         s_nop 0''')
    for pt in range(4):
        A(f'v_mfma_f32_16x16x32_bf16 v[{80+4*pt}:{83+4*pt}], v[{64+4*pt}:{67+4*pt}], v[44:47], 0')
    for pt in range(4):
        A(f'v_mfma_f32_16x16x16_bf16 v[{80+4*pt}:{83+4*pt}], v[{16+2*pt}:{17+2*pt}], v[48:49], v[{80+4*pt}:{83+4*pt}]')
    A(f'''s_add_u32 s80, s80, {32*8192}
          s_add_u32 s81, s81, {32*8192}
          s_add_u32 s82, s82, 65536
          s_nop 1''')
    for pt in range(4):
        A(f'''v_cvt_pk_bf16_f32 v{96+2*pt}, v{80+4*pt}, v{81+4*pt}
              v_cvt_pk_bf16_f32 v{97+2*pt}, v{82+4*pt}, v{83+4*pt}''')
    A('s_nop 1')
    def accT(T): return 16+4*T
    for T in range(10):
        a = accT(T)
        A(f'v_mfma_f32_16x16x32_bf16 v[{a}:{a+3}], v[{worg(T,0)}:{worg(T,0)+3}], v[96:99], 0')
    def merged_store(P):
        a = accT(2*P); b = accT(2*P+1)
        for r in range(4): A(f'v_mov_b32_dpp v{a+r}, v{b+r} row_shr:8 row_mask:0xf bank_mask:0xc')
        for r in range(4): A(f'v_and_or_b32 v{a+r}, v{a+r}, s78, v111')
        A(f'buffer_store_dwordx4 v[{a}:{a+3}], v10, s[16:19], {"0" if P < 4 else "s86"} offen offset:{(P&3)*1024} sc1')
    for T in range(10):
        a = accT(T)
        A(f'v_mfma_f32_16x16x32_bf16 v[{a}:{a+3}], v[{worg(T,1)}:{worg(T,1)+3}], v[100:103], v[{a}:{a+3}]')
        if T in (5, 7, 9): merged_store((T-5)//2)
    A('s_nop 1')
    merged_store(3)
    merged_store(4)
    if FUSED:
        Lok = A.newlabel('cok'); Lw = A.newlabel('cw')
        A(f's_cmp_ge_u32 s92, 64\ns_cbranch_scc1 {Lok}\nv_mov_b32 v96, s91\ns_mov_b32 s90, 0')
        A.label(Lw)
        A(f'''s_add_u32 s90, s90, 1
              s_cmp_gt_u32 s90, 400000
              s_cbranch_scc1 {Lend}
              buffer_load_dword v97, v96, s[16:19], 0 offen sc1
              s_waitcnt vmcnt(0)
              v_readfirstlane_b32 s7, v97
              s_cmp_ge_u32 s7, 64
              s_cbranch_scc0 {Lw}''')
        A.label(Lok)
    kv_prefetch()
    stamp(A, 2)
    A(f's_cmp_ge_u32 s3, 40\ns_cbranch_scc1 {Lnored}')
    if ADAPT: dsleep(A, 93)
    else:
        for _ in range(D1): A('s_sleep 2')
    Lp = A.newlabel('cpollB')
    A('s_mov_b32 s90, 0')
    A.label(Lp)
    A(f's_add_u32 s90, s90, 1\ns_cmp_gt_u32 s90, 400000\ns_cbranch_scc1 {Lend}')
    for k in range(8):
        A(f's_mov_b32 s7, {k*8*20480}\nbuffer_load_dwordx4 v[{16+4*k}:{19+4*k}], v11, s[16:19], s7 offen sc1')
    A('s_waitcnt vmcnt(0)')
    Lodd = A.newlabel('codd'); Lrdy = A.newlabel('crdy')
    A(f's_bitcmp1_b32 s79, 0\ns_cbranch_scc1 {Lodd}')
    for i in range(0, 32, 4):
        A(f'v_and_b32 v{48+i//4}, v{16+i}, v{17+i}\nv_and_b32 v{96+i//4}, v{18+i}, v{19+i}')
    for i in range(8): A(f'v_and_b32 v{48+i}, v{48+i}, v{96+i}')
    A('''v_and_b32 v48, v48, v49
         v_and_b32 v50, v50, v51
         v_and_b32 v52, v52, v53
         v_and_b32 v54, v54, v55
         v_and_b32 v48, v48, v50
         v_and_b32 v52, v52, v54
         v_and_b32 v48, v48, v52
         v_and_b32 v48, 1, v48
         v_cmp_eq_u32 vcc, 0, v48''')
    A(f's_and_b64 exec, exec, vcc\ns_cbranch_execnz {Lp}\ns_branch {Lrdy}')
    A.label(Lodd)
    for i in range(0, 30, 3): A(f'v_or3_b32 v{48+i//3 if i//3 < 8 else 96+i//3-8}, v{16+i}, v{17+i}, v{18+i}')
    A('''v_or3_b32 v48, v48, v49, v50
         v_or3_b32 v51, v51, v52, v53
         v_or3_b32 v54, v54, v55, v96
         v_or3_b32 v97, v97, v46, v47
         v_or3_b32 v48, v48, v51, v54
         v_or_b32 v48, v48, v97
         v_and_b32 v48, 1, v48
         v_cmp_ne_u32 vcc, 0, v48''')
    A(f's_and_b64 exec, exec, vcc\ns_cbranch_execnz {Lp}')
    A.label(Lrdy)
    A('s_mov_b64 exec, -1')
    if ADAPT: dadapt(A, 93)
    for k in range(0, 16, 2): A(f'v_pk_add_f32 v[{16+k}:{17+k}], v[{16+k}:{17+k}], v[{32+k}:{33+k}]')
    for k in range(0, 8, 2): A(f'v_pk_add_f32 v[{16+k}:{17+k}], v[{16+k}:{17+k}], v[{24+k}:{25+k}]')
    for k in range(0, 4, 2): A(f'v_pk_add_f32 v[{16+k}:{17+k}], v[{16+k}:{17+k}], v[{20+k}:{21+k}]')
    for r in range(4): A(f'v_mov_b32 v{20+r}, v{16+r}')
    A('s_nop 1')
    for r in range(4): A(f'v_permlane32_swap_b32 v{16+r}, v{20+r}')
    for r in range(0, 4, 2): A(f'v_pk_add_f32 v[{16+r}:{17+r}], v[{16+r}:{17+r}], v[{20+r}:{21+r}]')
    for r in range(4): A(f'v_mov_b32 v{20+r}, v{16+r}')
    A('s_nop 1')
    for r in range(4): A(f'v_permlane16_swap_b32 v{16+r}, v{20+r}')
    for r in range(0, 4, 2): A(f'v_pk_add_f32 v[{16+r}:{17+r}], v[{16+r}:{17+r}], v[{20+r}:{21+r}]')
    A('s_nop 1')
    for r in range(4): A(f'v_add_f32_dpp v{16+r}, v{16+r}, v{16+r} row_ror:8 row_mask:0xf bank_mask:0xf')
    Lnp = A.newlabel('cnopub')
    A('''v_cvt_pk_bf16_f32 v20, v16, v17
         v_cvt_pk_bf16_f32 v21, v18, v19
         v_mov_b32 v22, 0x7fff7fff
         v_cmp_eq_u32 vcc, -1, v20
         s_nop 1
         v_cndmask_b32 v20, v20, v22, vcc
         v_cmp_eq_u32 vcc, -1, v21
         s_nop 1
         v_cndmask_b32 v21, v21, v22, vcc
         buffer_store_dwordx2 v[20:21], v12, s[16:19], s83 offen sc1''')
    A.label(Lnp)
    Lgo = A.newlabel('cgo')
    if ADAPT:
        A.label(Lnored)
        dsleep(A, 94)
    else:
        for _ in range(D2): A('s_sleep 2')
        A(f's_branch {Lgo}')
        A.label(Lnored)
        for _ in range(D3): A('s_sleep 2')
    A.label(Lgo)
    stamp(A, 3)
    Lg = A.newlabel('cpollA')
    A('s_mov_b32 s90, 0')
    A.label(Lg)
    A(f's_add_u32 s90, s90, 1\ns_cmp_gt_u32 s90, 400000\ns_cbranch_scc1 {Lend}')
    for k in range(5):
        A(f's_add_u32 s7, s83, {k*4096}\nbuffer_load_dwordx2 v[{24+2*k}:{25+2*k}], v13, s[16:19], s7 offen sc1')
    A('s_waitcnt vmcnt(0)')
    A('v_cmp_eq_u32 vcc, -1, v24')
    for i in range(1, 10):
        A(f'v_cmp_eq_u32 s[84:85], -1, v{24+i}\ns_or_b64 vcc, vcc, s[84:85]')
    A(f's_and_b64 exec, exec, vcc\ns_cbranch_execnz {Lg}\ns_mov_b64 exec, -1')
    if ADAPT: dadapt(A, 94)
    stamp(A, 4)
    for k in range(5):
        A(f'ds_write_b64 v{104+k}, v[{24+2*k}:{25+2*k}]')
    def cch_signal():
        A(f'''s_lshl_b32 s7, s3, 4
              s_lshl_b32 s100, s6, 2
              s_add_u32 s7, s7, s100
              s_add_u32 s7, s7, {cnt_addr(CCH)}
              s_add_u32 s100, s79, 1
              v_mov_b32 v40, s100
              v_mov_b32 v41, s7
              v_cmp_eq_u32 vcc, 0, v1
              s_and_saveexec_b64 s[84:85], vcc
              buffer_store_dword v40, v41, s[16:19], 0 offen sc1
              s_mov_b64 exec, s[84:85]''')
    if FUSED: cch_signal()
    A(f'''s_add_u32 s79, s79, 1
          s_add_u32 s83, s83, 20480
          s_add_u32 s87, s87, 10240
          s_add_u32 s88, s88, 10240
          v_xor_b32 v111, 1, v111
          s_branch {Ltop}''')
    A.label(Lfin)
    if FUSED:
        A('s_waitcnt vmcnt(0)')
        cch_signal()
    A.label(Lend)
    A('s_mov_b64 exec, -1')
    if PROF:
        for i in range(6): A(f'v_mov_b32 v{16+i}, s{92+i}')
        A(f'''s_lshl_b32 s7, s3, 7
              s_lshl_b32 s37, s6, 5
              s_add_u32 s7, s7, s37
              s_add_u32 s7, s7, {FLAGS}
              v_mov_b32 v24, s7
              buffer_store_dwordx4 v[16:19], v24, s[16:19], 0 offen
              buffer_store_dwordx2 v[20:21], v24, s[16:19], 0 offen offset:16''')

def task_init(A):
    A(f'''s_lshl_b32 s4, s3, 12
          v_lshlrev_b32 v1, 4, v0
          v_add_u32 v1, s4, v1
          v_mov_b32 v4, 0
          v_mov_b32 v5, 0
          v_mov_b32 v6, 0
          v_mov_b32 v7, 0
          v_mov_b32 v8, -1
          v_mov_b32 v9, -1
          v_mov_b32 v10, -1
          v_mov_b32 v11, -1''')
    for p in range(5):
        A(f's_mov_b32 s5, {PART + p*262144}\nbuffer_store_dwordx4 v[4:7], v1, s[16:19], s5 offen')
    for p in range(3):
        A(f's_mov_b32 s5, {MEMB + p*262144}\nbuffer_store_dwordx4 v[8:11], v1, s[16:19], s5 offen')

if __name__ == '__main__':
    build([('init_kernel', 64, 0, task_init, (256, 256)),
           ('proj_kernel', 1536, P_LDS, task_P, (256, 256)),
           ('chain_kernel', 64, C_LDS, task_chain, (512, 256))], 't2.s')
    print('C_LDS', C_LDS)
```

```python
from asmlib import *
from layout import *
from gen import *
O2_W = 4608
O2_WAVE = 4608 + 9216
O2_LDS = 4*O2_WAVE
PSPL = 112*MB
CSPL = 256
def task_O2(A, split=False):
    srd(A, 12, I_WO, 4096*1280)
    if split:
        A('s_and_b32 s39, s3, 3\ns_lshr_b32 s3, s3, 2')
    A('''s_mul_i32 s30, s3, 52429
         s_lshr_b32 s30, s30, 19            ; seg = s3/10
         s_mul_i32 s31, s30, 10
         s_sub_u32 s31, s3, s31             ; ct
         v_and_b32 v7, 63, v0
         v_lshrrev_b32 v20, 6, v0
         s_nop 0
         v_readfirstlane_b32 s6, v20
         v_and_b32 v24, 15, v7
         v_lshrrev_b32 v25, 4, v7
         v_lshrrev_b32 v26, 2, v24
         v_and_b32 v27, 3, v24''')
    A(f'''s_mul_i32 s32, s6, {O2_WAVE}
          v_lshrrev_b32 v20, 3, v7
          v_and_b32 v21, 7, v7
          v_mul_u32_u24 v3, 144, v20
          v_lshl_add_u32 v3, v21, 4, v3
          v_add_u32 v3, s32, v3
          s_lshl_b32 s7, s30, 5
          v_add_u32 v28, s7, v20
          v_lshlrev_b32 v8, 13, v28
          v_lshl_add_u32 v8, v21, 4, v8
          {'s_lshl_b32 s7, s6, 11' if not split else 's_lshl_b32 s7, s39, 2'}
          {'' if not split else 's_add_u32 s7, s7, s6'}
          {'' if not split else 's_mov_b32 s38, s7'}
          {'' if not split else 's_lshl_b32 s7, s7, 9'}
          s_add_u32 s7, s7, {OX}
          v_add_u32 v8, s7, v8
          v_add_u32 v9, 0x10000, v8
          v_add_u32 v10, 0x20000, v8
          v_add_u32 v11, 0x30000, v8
          v_mul_u32_u24 v12, 1280, v20
          v_lshl_add_u32 v12, v21, 4, v12
          {'s_mul_i32 s7, s6, %d' % (1024*1280) if not split else 's_mul_i32 s7, s38, %d' % (256*1280)}
          s_lshl_b32 s33, s31, 7
          s_add_u32 s7, s7, s33
          v_add_u32 v12, s7, v12
          v_lshl_add_u32 v28, v26, 3, v27
          v_mul_u32_u24 v5, 144, v28
          v_lshl_add_u32 v5, v25, 4, v5
          v_add_u32 v5, s32, v5
          v_lshl_add_u32 v28, v25, 3, v26
          v_mul_u32_u24 v6, 144, v28
          v_lshl_add_u32 v6, v27, 4, v6
          v_add_u32 v6, s32, v6
          v_add_u32 v6, {O2_W}, v6
          s_mov_b32 s34, 0
          s_mov_b32 s35, 0''')
    sets = [('v', 128), ('a', 0), ('a', 48), ('a', 96)]
    def R(st, i): return f'{sets[st][0]}[{sets[st][1]+4*i}:{sets[st][1]+4*i+3}]'
    def issue(st):
        for p in range(4):
            A(f'buffer_load_dwordx4 {R(st,p)}, v{8+p}, s[16:19], s34 offen sc1')
        for p in range(8):
            A(f's_add_u32 s36, s35, {p*8*1280}\nbuffer_load_dwordx4 {R(st,4+p)}, v12, s[12:15], s36 offen')
        A(f's_add_u32 s34, s34, 128\ns_add_u32 s35, s35, {64*1280}')
    def wlds(st):
        for p in range(4): A(f'ds_write_b128 v3, {R(st,p)} offset:{p*8*144}')
        for p in range(8): A(f'ds_write_b128 v3, {R(st,4+p)} offset:{O2_W + p*8*144}')
    for i in range(32): A(f'v_mov_b32 v{64+i}, 0')
    for st in range(4): issue(st)
    A('s_mov_b32 s5, 0')
    L = A.newlabel('o2l'); A.label(L)
    def body(last):
      for st in range(4):
        A(f's_waitcnt vmcnt({36 if not last else 12*(3-st)})')
        wlds(st)
        for kk in range(2):
            for mt in range(2):
                A(f'ds_read_b128 v[{16+4*mt+8*kk}:{19+4*mt+8*kk}], v5 offset:{4*mt*144 + kk*64}')
            for nt in range(4):
                for hf in range(2):
                    off = (kk*32+4*hf)*144 + (32*(nt>>1)+4*(nt&1))*2
                    A(f'ds_read_b64_tr_b16 v[{32+16*kk+4*nt+2*hf}:{33+16*kk+4*nt+2*hf}], v6 offset:{off}')
        A('s_waitcnt lgkmcnt(0)')
        if not last: issue(st)
        for kk in range(2):
            for nt in range(4):
                for mt in range(2):
                    acc = 64 + 4*(nt*2+mt)
                    A(f'v_mfma_f32_16x16x32_bf16 v[{acc}:{acc+3}], v[{32+16*kk+4*nt}:{35+16*kk+4*nt}], v[{16+4*mt+8*kk}:{19+4*mt+8*kk}], v[{acc}:{acc+3}]')
    if not split:
        body(False)
        A(f's_add_u32 s5, s5, 1\ns_cmp_lt_u32 s5, 3\ns_cbranch_scc1 {L}')
    body(True)
    A('s_nop 7\ns_barrier')
    A('''v_and_b32 v24, 15, v7
         v_lshrrev_b32 v25, 4, v7
         v_lshrrev_b32 v26, 2, v24
         v_and_b32 v27, 3, v24''')
    A(f'''s_lshl_b32 s7, s6, 13
          v_lshlrev_b32 v3, 4, v7
          v_add_u32 v4, s7, v3''')
    for t in range(8): A(f'ds_write_b128 v4, v[{64+4*t}:{67+4*t}] offset:{t*1024}')
    A('s_waitcnt lgkmcnt(0)\ns_barrier')
    A('''s_lshr_b32 s37, s6, 1
         s_and_b32 s38, s6, 1
         s_lshl_b32 s7, s37, 12
         s_lshl_b32 s36, s38, 10
         s_add_u32 s7, s7, s36
         v_add_u32 v4, s7, v3''')
    for ww in range(4):
        for t in range(2):
            A(f'ds_read_b128 v[{64+8*ww+4*t}:{67+8*ww+4*t}], v4 offset:{ww*8192 + t*2048}')
    A(f'''v_lshl_add_u32 v28, v26, 3, v27
          s_lshl_b32 s7, s30, 5
          s_lshl_b32 s36, s38, 2
          s_add_u32 s7, s7, s36
          v_add_u32 v28, s7, v28
          v_lshlrev_b32 v30, 3, v28
          v_add_u32 v30, {GBUF}, v30
          v_mul_u32_u24 v29, 1280, v28
          v_lshl_add_u32 v29, v25, 4, v29
          s_lshl_b32 s7, s31, 7
          s_lshl_b32 s36, s37, 6
          s_add_u32 s7, s7, s36
          v_add_u32 v29, s7, v29
          s_mov_b32 s36, {ABUF}
          buffer_load_dwordx2 v[100:101], v30, s[16:19], 0 offen sc1
          buffer_load_dwordx4 v[104:107], v29, s[16:19], s36 offen sc1
          s_waitcnt lgkmcnt(0)''')
    for i in range(0, 8, 2):
        A(f'''v_pk_add_f32 v[{64+i}:{65+i}], v[{64+i}:{65+i}], v[{72+i}:{73+i}]
              v_pk_add_f32 v[{80+i}:{81+i}], v[{80+i}:{81+i}], v[{88+i}:{89+i}]''')
    for i in range(0, 8, 2):
        A(f'v_pk_add_f32 v[{64+i}:{65+i}], v[{64+i}:{65+i}], v[{80+i}:{81+i}]')
    Ldone = A.newlabel('o2done')
    if split:
        A(f'''s_lshl_b32 s7, s3, 2
              s_add_u32 s7, s7, s39
              s_lshl_b32 s7, s7, 13
              s_add_u32 s7, s7, {PSPL}
              v_lshlrev_b32 v3, 5, v0
              buffer_store_dwordx4 v[64:67], v3, s[16:19], s7 offen sc1
              buffer_store_dwordx4 v[68:71], v3, s[16:19], s7 offen offset:16 sc1
              s_waitcnt vmcnt(0)
              s_barrier
              v_mov_b32 v4, 1
              s_lshl_b32 s7, s3, 2
              s_add_u32 s7, s7, {FLAGS + 16384}
              v_mov_b32 v5, s7
              v_cmp_eq_u32 vcc, 0, v0
              s_and_saveexec_b64 s[84:85], vcc
              s_cbranch_execz .Lo2sk
              buffer_atomic_add v4, v5, s[16:19], 0 offen sc0
              s_waitcnt vmcnt(0)
              v_mov_b32 v5, 151000
              ds_write_b32 v5, v4''')
        A.label('.Lo2sk')
        A(f'''s_mov_b64 exec, s[84:85]
              s_waitcnt lgkmcnt(0)
              s_barrier
              v_mov_b32 v5, 151000
              ds_read_b32 v4, v5
              s_waitcnt lgkmcnt(0)
              v_readfirstlane_b32 s7, v4
              s_cmp_lg_u32 s7, 3
              s_cbranch_scc1 {Ldone}
              s_lshl_b32 s7, s3, 15
              s_add_u32 s7, s7, {PSPL}''')
        for q in range(4):
            A(f'''buffer_load_dwordx4 v[{64+8*q}:{67+8*q}], v3, s[16:19], s7 offen sc1
                  buffer_load_dwordx4 v[{68+8*q}:{71+8*q}], v3, s[16:19], s7 offen offset:16 sc1
                  s_add_u32 s7, s7, 8192''')
        A('s_waitcnt vmcnt(0)')
        for i in range(0, 8, 2):
            A(f'''v_pk_add_f32 v[{64+i}:{65+i}], v[{64+i}:{65+i}], v[{72+i}:{73+i}]
                  v_pk_add_f32 v[{80+i}:{81+i}], v[{80+i}:{81+i}], v[{88+i}:{89+i}]''')
        for i in range(0, 8, 2):
            A(f'v_pk_add_f32 v[{64+i}:{65+i}], v[{64+i}:{65+i}], v[{80+i}:{81+i}]')
    A('s_waitcnt vmcnt(0)')
    for j in range(4):
        a = 64 + 2*j
        A(f'''v_cvt_pk_bf16_f32 v16, v{a}, v{a+1}
              v_lshlrev_b32 v17, 16, v16
              v_and_b32 v18, 0xffff0000, v16
              v_mul_f32 v17, v17, v101
              v_mul_f32 v18, v18, v101
              v_cvt_pk_bf16_f32 v16, v17, v18
              v_lshlrev_b32 v17, 16, v{104+j}
              v_and_b32 v18, 0xffff0000, v{104+j}
              v_mul_f32 v17, v17, v100
              v_mul_f32 v18, v18, v100
              v_cvt_pk_bf16_f32 v19, v17, v18
              v_lshlrev_b32 v17, 16, v16
              v_and_b32 v18, 0xffff0000, v16
              v_lshlrev_b32 v20, 16, v19
              v_and_b32 v21, 0xffff0000, v19
              v_add_f32 v17, v17, v20
              v_add_f32 v18, v18, v21
              v_cvt_pk_bf16_f32 v{32+j}, v17, v18''')
    A('buffer_store_dwordx4 v[32:35], v29, s[20:23], 0 offen')
    A.label(Ldone)
```

```python
import sys
import chain
from gen import *
from chain import CKV, CQ, CF1, CF2, CF3, CG_, CCH, CT, cnt_addr, C_LDS
from post import task_T, task_G
from fft import task_F1, task_F2, task_F3
from o2 import task_O2
chain.FUSED = True
QSLOT = 152000
NWG = 256
R_KV, R_G, R_Q, R_F1, R_F2, R_F3, R_TO = 0, 1024, 1088, 1600, 1792, 2113, 2273
KSPL = 56
R_TB = R_TO + KSPL*18
NT = R_TB + (65-KSPL)*48

def wait_cnt(A, Ldead, addr_code, tgt, srdn='s[16:19]', slp=24):
    Lw = A.newlabel('ww'); Lok = A.newlabel('wok')
    A(addr_code)
    A('v_mov_b32 v250, s100\ns_mov_b32 s101, 0')
    A.label(Lw)
    A(f'''buffer_load_dword v251, v250, {srdn}, 0 offen sc1
          s_waitcnt vmcnt(0)
          v_readfirstlane_b32 s100, v251
          s_cmp_ge_u32 s100, {tgt}
          s_cbranch_scc1 {Lok}
          s_add_u32 s101, s101, 1
          s_cmp_gt_u32 s101, 200000
          s_cbranch_scc1 {Ldead}
          s_sleep {slp}
          s_branch {Lw}''')
    A.label(Lok)

def wait_progress(A, Ldead):
    Lw = A.newlabel('wp'); Lok = A.newlabel('wpok'); Ls = A.newlabel('wps')
    A(f'v_mov_b32 v250, {cnt_addr(chain.CPROG)}\ns_mov_b32 s101, 0')
    A.label(Lw)
    A(f'''buffer_load_dword v251, v250, s[16:19], 0 offen sc1
          s_waitcnt vmcnt(0)
          v_readfirstlane_b32 s100, v251
          s_add_u32 s100, s100, 1
          s_cmp_ge_u32 s100, s95
          s_cbranch_scc1 {Lok}
          s_add_u32 s101, s101, 1
          s_cmp_gt_u32 s101, 100000
          s_cbranch_scc1 {Ldead}
          s_sub_u32 s100, s95, s100''')
    A.label(Ls)
    A(f'''s_sleep 110
          s_sub_u32 s100, s100, 1
          s_cmp_lg_u32 s100, 0
          s_cbranch_scc1 {Ls}
          s_branch {Lw}''')
    A.label(Lok)

def wait_flags(A, Ldead):
    Lw = A.newlabel('wf'); Lok = A.newlabel('wfok')
    A(f'''v_and_b32 v250, 31, v0
          v_lshlrev_b32 v250, 2, v250
          s_lshl_b32 s100, s5, 7
          s_add_u32 s100, s100, {cnt_addr(CCH)}
          v_add_u32 v250, s100, v250
          s_mov_b32 s101, 0''')
    A.label(Lw)
    A(f'''buffer_load_dword v251, v250, s[16:19], 0 offen sc1
          s_waitcnt vmcnt(0)
          v_cmp_ge_u32 vcc, s95, v251
          s_cbranch_vccz {Lok}
          s_add_u32 s101, s101, 1
          s_cmp_gt_u32 s101, 200000
          s_cbranch_scc1 {Ldead}
          s_sleep 12
          s_branch {Lw}''')
    A.label(Lok)

def waits(A, Ldead, fns):
    Lsk = A.newlabel('wsk')
    A(f's_cmp_lg_u32 s39, 0\ns_cbranch_scc1 {Lsk}')
    for f in fns: f()
    A.label(Lsk)
    A('s_barrier')

def fused_body(A):
    Lwork = A.newlabel('work'); Lexit = A.newlabel('fexit')
    srd(A, 96, I_DBG, 256)
    A(f's_cmp_ge_u32 s2, 64\ns_cbranch_scc1 {Lwork}')
    chain.task_chain(A)
    A(f's_branch {Lexit}')
    A.label(Lwork)
    A('v_lshrrev_b32 v250, 6, v0\ns_nop 0\nv_readfirstlane_b32 s39, v250')
    waits(A, Lexit, [lambda: wait_cnt(A, Lexit, 's_mov_b32 s100, 128', 64, 's[96:99]', 4)])
    A('s_mov_b32 s94, 4000')
    A('s_mov_b32 s93, -1')
    Lloop = A.newlabel('wloop'); A.label(Lloop)
    Lns = A.newlabel('nosig'); Lskip = A.newlabel('skipf')
    if chain.TRACE:
        A(f'''s_waitcnt vmcnt(0)
              s_memrealtime s[100:101]
              s_waitcnt lgkmcnt(0)
              v_mov_b32 v250, s100
              s_lshl_b32 s101, s94, 2
              s_add_u32 s101, s101, {chain.TRC + 65536 + 16384}
              v_mov_b32 v251, s101
              buffer_store_dword v250, v251, s[16:19], 0 offen''')
    A(f'''s_waitcnt vmcnt(0) lgkmcnt(0)
          s_barrier
          v_cmp_eq_u32 vcc, 0, v0
          s_and_saveexec_b64 s[84:85], vcc
          s_cbranch_execz {Lskip}
          v_mov_b32 v250, 1
          s_cmp_eq_u32 s93, -1
          s_cbranch_scc1 {Lns}
          v_mov_b32 v251, s93
          buffer_atomic_add v250, v251, s[16:19], 0 offen''')
    A.label(Lns)
    A(f'''v_mov_b32 v251, 0
          buffer_atomic_add v250, v251, s[96:99], 0 offen sc0
          s_waitcnt vmcnt(0)
          v_mov_b32 v251, {QSLOT}
          ds_write_b32 v251, v250''')
    A.label(Lskip)
    A(f'''s_mov_b64 exec, s[84:85]
          s_waitcnt lgkmcnt(0)
          s_barrier
          v_mov_b32 v251, {QSLOT}
          ds_read_b32 v250, v251
          s_waitcnt lgkmcnt(0)
          v_readfirstlane_b32 s94, v250
          s_mov_b32 s93, -1
          s_cmp_ge_u32 s94, {NT}
          s_cbranch_scc1 {Lexit}''')
    if chain.TRACE:
        A(f'''s_memrealtime s[100:101]
              s_waitcnt lgkmcnt(0)
              v_mov_b32 v250, s100
              s_lshl_b32 s101, s94, 2
              s_add_u32 s101, s101, {chain.TRC + 65536}
              v_mov_b32 v251, s101
              buffer_store_dword v250, v251, s[16:19], 0 offen''')
    labs = {k: A.newlabel('t'+k) for k in ('P','G','F1','F2','F3','T','O')}
    LQ = A.newlabel('tQ'); LTO = A.newlabel('tTO')
    A(f'''s_cmp_lt_u32 s94, {R_G}
          s_cbranch_scc0 {labs['G']}
          s_mov_b32 s3, s94
          s_lshr_b32 s93, s3, 6
          s_lshl_b32 s93, s93, 6
          s_add_u32 s93, s93, {cnt_addr(CKV)}
          s_branch {labs['P']}''')
    A.label(labs['G'])
    A(f'''s_cmp_lt_u32 s94, {R_Q}
          s_cbranch_scc0 {LQ}
          s_sub_u32 s3, s94, {R_G}
          s_mov_b32 s93, {cnt_addr(CG_)}''')
    task_G(A); A(f's_branch {Lloop}')
    A.label(LQ)
    A(f'''s_cmp_lt_u32 s94, {R_F1}
          s_cbranch_scc0 {labs['F1']}
          s_sub_u32 s3, s94, {R_Q}
          s_lshr_b32 s93, s3, 5
          s_lshl_b32 s93, s93, 6
          s_add_u32 s93, s93, {cnt_addr(CQ)}
          s_add_u32 s3, s3, 1024''')
    A.label(labs['P'])
    task_P(A); A(f's_branch {Lloop}')
    A.label(labs['F1'])
    A(f'''s_cmp_lt_u32 s94, {R_F2}
          s_cbranch_scc0 {labs['F2']}
          s_sub_u32 s3, s94, {R_F1}
          s_mov_b32 s93, {cnt_addr(CF1)}''')
    task_F1(A); A(f's_branch {Lloop}')
    A.label(labs['F2'])
    A(f'''s_cmp_lt_u32 s94, {R_F3}
          s_cbranch_scc0 {labs['F3']}
          s_sub_u32 s3, s94, {R_F2}
          s_mov_b32 s93, {cnt_addr(CF2)}''')
    waits(A, Lexit, [lambda: wait_cnt(A, Lexit, f's_mov_b32 s100, {cnt_addr(CF1)}', 192, slp=40)])
    task_F2(A); A(f's_branch {Lloop}')
    A.label(labs['F3'])
    A(f'''s_cmp_lt_u32 s94, {R_TO}
          s_cbranch_scc0 {LTO}
          s_sub_u32 s3, s94, {R_F3}
          s_mul_i32 s93, s3, 52429
          s_lshr_b32 s93, s93, 18
          s_lshl_b32 s93, s93, 6
          s_add_u32 s93, s93, {cnt_addr(CF3)}''')
    waits(A, Lexit, [lambda: wait_cnt(A, Lexit, f's_mov_b32 s100, {cnt_addr(CF2)}', 321, slp=40)])
    task_F3(A); A(f's_branch {Lloop}')
    A.label(LTO)
    LTB = A.newlabel('tTB'); LTC = A.newlabel('tTC')
    A(f'''s_cmp_lt_u32 s94, {R_TB}
          s_cbranch_scc0 {LTB}
          s_sub_u32 s95, s94, {R_TO}
          s_mul_i32 s4, s95, 3641            ; /18
          s_lshr_b32 s4, s4, 16              ; k
          s_mul_i32 s5, s4, 18
          s_sub_u32 s5, s95, s5              ; j
          s_branch {LTC}''')
    A.label(LTB)
    A(f'''s_sub_u32 s95, s94, {R_TB}
          s_mul_i32 s4, s95, 1366            ; /48
          s_lshr_b32 s4, s4, 16
          s_mul_i32 s5, s4, 48
          s_sub_u32 s5, s95, s5
          s_add_u32 s4, s4, {KSPL}''')
    A.label(LTC)
    A(f'''
          s_cmp_lt_u32 s5, 8
          s_cbranch_scc0 {labs['O']}
          s_cmp_ge_u32 s4, 64
          s_cbranch_scc1 {Lloop}
          s_lshl_b32 s3, s4, 3
          s_add_u32 s3, s3, s5
          s_lshl_b32 s93, s4, 6
          s_add_u32 s93, s93, {cnt_addr(CT)}
          s_mov_b32 s95, s4''')
    waits(A, Lexit, [lambda: wait_progress(A, Lexit),
      lambda: wait_flags(A, Lexit),
      lambda: wait_cnt(A, Lexit, f's_lshr_b32 s100, s95, 2\ns_lshl_b32 s100, s100, 6\ns_add_u32 s100, s100, {cnt_addr(CKV)}', 64),
      lambda: wait_cnt(A, Lexit, f's_lshr_b32 s100, s95, 2\ns_lshl_b32 s100, s100, 6\ns_add_u32 s100, s100, {cnt_addr(CQ)}', 32)])
    task_T(A); A(f's_branch {Lloop}')
    A.label(labs['O'])
    A(f'''s_cmp_eq_u32 s4, 0
          s_cbranch_scc1 {Lloop}
          s_sub_u32 s95, s4, 1               ; seg
          s_cmp_ge_u32 s4, {KSPL}
          s_cselect_b32 s3, 40, 10
          s_mul_i32 s3, s95, s3
          s_add_u32 s3, s3, s5
          s_sub_u32 s3, s3, 8''')
    waits(A, Lexit, [lambda: wait_progress(A, Lexit),
      lambda: wait_cnt(A, Lexit, f's_lshl_b32 s100, s95, 6\ns_add_u32 s100, s100, {cnt_addr(CT)}', 8, slp=12),
      lambda: wait_cnt(A, Lexit, f's_lshr_b32 s100, s95, 1\ns_lshl_b32 s100, s100, 6\ns_add_u32 s100, s100, {cnt_addr(CF3)}', 5),
      lambda: wait_cnt(A, Lexit, f's_mov_b32 s100, {cnt_addr(CG_)}', 64)])
    LOS = A.newlabel('tOS')
    A(f's_cmp_ge_u32 s95, {KSPL-1}\ns_cbranch_scc1 {LOS}')
    task_O2(A); A(f's_branch {Lloop}')
    A.label(LOS)
    task_O2(A, True)
    A('v_lshrrev_b32 v250, 6, v0\ns_nop 0\nv_readfirstlane_b32 s39, v250')
    A(f's_branch {Lloop}')
    A.label(Lexit)

if __name__ == '__main__':
    d = [int(x) for x in sys.argv[2:5]] if len(sys.argv) > 4 else (12, 12, 36)
    chain.D1, chain.D2, chain.D3 = d
    chain.TRACE = len(sys.argv) > 5 and sys.argv[5] == 't'
    if len(sys.argv) > 7: chain.ADAPT = (int(sys.argv[6]), int(sys.argv[7]))
    assert all((k*3641)>>16 == k//18 for k in range(65*18)) and all((k*1366)>>16 == k//48 for k in range(9*48))
    build([('fused_kernel', NWG, C_LDS, fused_body, (512, 256))], sys.argv[1])
```

```python
from asmlib import *
from layout import *
from gen import *
from post import softmax12, round_scale12

MSTR   = 1344
C_MEM  = 0
C_SC   = 12160
C_VM   = C_SC + 12288
C_RD   = C_VM + 2048
C_WO   = C_RD + 2048
C_STG  = C_WO + 81920
SSTR   = 656
C_LDS  = C_STG + 2*32*SSTR

def wreg(f):
    return ('a', 4*f) if f < 64 else ('v', 192 + 4*(f-64))
def worg(T, kk):
    return 112 + 4*(2*T+kk)
D1, D2, D3 = 0, 0, 0
ADAPT = None
def dsleep(A, sreg):
    L = A.newlabel('dsl'); A(f's_mov_b32 s7, s{sreg}'); A.label(L); A(f's_sleep 1\ns_sub_u32 s7, s7, 1\ns_cmp_gt_i32 s7, 0\ns_cbranch_scc1 {L}')
def dadapt(A, sreg):
    dec, inc = ADAPT
    A(f'''s_cmp_eq_u32 s90, 1
          s_cselect_b32 s7, {-dec & 0xffffffff}, {inc}
          s_add_i32 s{sreg}, s{sreg}, s7
          s_max_i32 s{sreg}, s{sreg}, 1''')
def wr4(f):
    t, b = wreg(f); return f'{t}[{b}:{b+3}]'
def wr2(f, hf):
    t, b = wreg(f); return f'{t}[{b+2*hf}:{b+2*hf+1}]'

PROF = False
def stamp(A, i):
    if TRACE:
        A(f'''s_memrealtime s[100:101]
              s_waitcnt lgkmcnt(0)
              v_mov_b32 v102, s100
              s_lshl_b32 s7, s3, 2
              s_add_u32 s7, s7, s6
              s_lshl_b32 s7, s7, 6
              s_add_u32 s7, s7, s79
              s_lshl_b32 s7, s7, 5
              s_add_u32 s7, s7, {TRC + (1<<20) + 4*i}
              v_mov_b32 v103, s7
              buffer_store_dword v102, v103, s[16:19], 0 offen''')
        return
    if not PROF: return
    A(f'''s_memtime s[98:99]
          s_waitcnt lgkmcnt(0)
          s_sub_u32 s100, s98, s91
          s_mov_b32 s91, s98
          s_add_u32 s{92+i}, s{92+i}, s100''')

FUSED = False
TRACE = False
TRC = 110*MB
CKV, CQ, CF1, CF2, CF3, CG_, CCH, CT, CPROG = 0, 16, 32, 33, 34, 66, 67, 131, 200
def cnt_addr(i): return FLAGS + 64*i

def task_chain(A, standalone=True):
    if FUSED:
        A(f'''v_lshlrev_b32 v1, 4, v0
              v_mov_b32 v4, 0
              v_mov_b32 v5, 0
              v_mov_b32 v6, 0
              v_mov_b32 v7, 0
              v_mov_b32 v8, -1
              v_mov_b32 v9, -1
              v_mov_b32 v10, -1
              v_mov_b32 v11, -1
              s_mul_i32 s4, s3, 20480
              s_add_u32 s4, s4, {PART}''')
        for p in range(5):
            A(f'buffer_store_dwordx4 v[4:7], v1, s[16:19], s4 offen sc1\ns_add_u32 s4, s4, 4096')
        A(f'''s_mul_i32 s4, s3, 20480
              s_add_u32 s4, s4, {MEMB}''')
        for p in range(5):
            A(f'buffer_store_dwordx4 v[8:11], v1, s[16:19], s4 offen sc1\ns_add_u32 s4, s4, 4096')
        A(f'''
              s_lshl_b32 s4, s3, 12
              s_add_u32 s4, s4, {FLAGS}
              s_cmp_lt_u32 s3, 5
              s_cselect_b32 s4, s4, 0x7ff00000
              buffer_store_dwordx4 v[4:7], v1, s[16:19], s4 offen sc1
              s_waitcnt vmcnt(0)
              s_barrier
              v_mov_b32 v4, 1
              v_mov_b32 v5, 128
              v_cmp_eq_u32 vcc, 0, v0
              s_and_saveexec_b64 s[84:85], vcc
              buffer_atomic_add v4, v5, s[96:99], 0 offen
              s_mov_b64 exec, s[84:85]''')
    srd(A, 12, I_WQ, 640*8192); srd(A, 24, I_WK, 640*8192); srd(A, 28, I_WV, 640*8192); srd(A, 68, I_WO, 4096*1280); srd(A, 72, I_MEM0, 10240)
    A('''s_lshr_b32 s4, s3, 1          ; head
         s_and_b32 s5, s3, 1           ; half j
         v_and_b32 v1, 63, v0
         v_lshrrev_b32 v2, 6, v0
         s_nop 0
         v_readfirstlane_b32 s6, v2    ; wave
         v_and_b32 v3, 15, v1          ; rho / i
         v_lshrrev_b32 v4, 4, v1       ; g
         v_lshrrev_b32 v5, 2, v3       ; rho>>2
         v_and_b32 v6, 3, v3           ; rho&3''')
    A(f'''v_lshrrev_b32 v8, 4, v0
          v_and_b32 v9, 15, v0
          v_lshlrev_b32 v10, 13, v8
          v_lshl_add_u32 v10, v9, 4, v10
          s_lshl_b32 s7, s4, 8
          v_add_u32 v10, s7, v10          ; q/k rows 0..15
          v_add_u32 v11, {16*8192}, v10   ; rows 16..31
          v_mul_u32_u24 v12, {SSTR}, v8
          v_lshl_add_u32 v12, v9, 4, v12
          v_add_u32 v12, {C_STG}, v12
          v_lshrrev_b32 v8, 3, v0
          v_and_b32 v9, 7, v0
          v_lshlrev_b32 v13, 13, v8
          v_lshl_add_u32 v13, v9, 4, v13
          s_lshl_b32 s37, s5, 7
          s_add_u32 s7, s7, s37
          v_add_u32 v13, s7, v13          ; v global
          v_mul_u32_u24 v14, {SSTR}, v8
          v_lshl_add_u32 v14, v9, 4, v14
          v_add_u32 v14, {C_STG+512}, v14''')
    A(f'''v_lshl_add_u32 v8, v4, 3, v5
          v_mul_u32_u24 v15, {SSTR}, v8
          v_lshl_add_u32 v15, v6, 4, v15       ; + 8c*2
          v_add_u32 v15, {C_STG}, v15
          s_lshl_b32 s7, s6, 6                 ; 32w*2
          v_add_u32 v16, s7, v15               ; q/k base
          s_lshr_b32 s7, s6, 1
          s_lshl_b32 s7, s7, 6                 ; 32(w>>1)*2
          s_and_b32 s37, s6, 1
          s_lshl_b32 s37, s37, 3               ; 4(w&1)*2
          s_add_u32 s7, s7, s37
          s_add_u32 s7, s7, 512
          v_add_u32 v17, s7, v15               ; v base''')
    def wl_issue(kk):
        b = 44 + 20*(kk%3)
        A(f's_mov_b32 s38, {kk*32*8192}')
        A(f'''buffer_load_dwordx4 v[{b}:{b+3}], v10, s[12:15], s38 offen
              buffer_load_dwordx4 v[{b+4}:{b+7}], v11, s[12:15], s38 offen
              buffer_load_dwordx4 v[{b+8}:{b+11}], v10, s[24:27], s38 offen
              buffer_load_dwordx4 v[{b+12}:{b+15}], v11, s[24:27], s38 offen
              buffer_load_dwordx4 v[{b+16}:{b+19}], v13, s[28:31], s38 offen''')
    def wl_write(kk):
        o = (kk&1)*32*SSTR; b = 44 + 20*(kk%3)
        A(f'''ds_write_b128 v12, v[{b}:{b+3}] offset:{o}
              ds_write_b128 v12, v[{b+4}:{b+7}] offset:{o+16*SSTR}
              ds_write_b128 v12, v[{b+8}:{b+11}] offset:{o+256}
              ds_write_b128 v12, v[{b+12}:{b+15}] offset:{o+16*SSTR+256}
              ds_write_b128 v14, v[{b+16}:{b+19}] offset:{o}''')
    def wl_read(kk, buf):
        o = buf*32*SSTR
        for tile in range(4):
            for hf in range(2):
                off = o + 4*hf*SSTR + (tile>>1)*256 + (tile&1)*8
                A(f'ds_read_b64_tr_b16 {wr2(tile*20+kk, hf)}, v16 offset:{off}')
        for hf in range(2):
            A(f'ds_read_b64_tr_b16 v[{40+2*hf}:{41+2*hf}], v17 offset:{o+4*hf*SSTR}')
        A(f's_waitcnt lgkmcnt(0)\nds_write_b128 v18, v[40:43] offset:{kk*1024}')
    A(f'''s_mul_i32 s7, s6, 20480
          s_add_u32 s7, s7, {C_WO}
          v_lshlrev_b32 v18, 4, v1
          v_add_u32 v18, s7, v18''')
    wl_issue(0); wl_issue(1); wl_issue(2)
    for kk in range(20):
        A(f's_waitcnt vmcnt({5*min(2, 19-kk)})')
        wl_write(kk)
        A('s_waitcnt lgkmcnt(0)')
        if kk < 17: wl_issue(kk+3)
        A('s_barrier')
        wl_read(kk, kk&1)
    A('s_waitcnt lgkmcnt(0)\ns_barrier')
    WSTR = 1296
    A(f'''s_lshl_b32 s7, s4, 7
          s_lshl_b32 s37, s5, 6
          s_add_u32 s7, s7, s37               ; h*128 + 64j
          s_lshl_b32 s37, s6, 3
          s_add_u32 s7, s7, s37               ; + 8w
          s_mul_i32 s7, s7, 1280
          v_lshlrev_b32 v10, 4, v1
          v_add_u32 v10, s7, v10              ; global x4
          v_lshlrev_b32 v11, 2, v1
          v_add_u32 v11, s7, v11
          v_add_u32 v11, 1024, v11            ; global x1
          s_mul_i32 s7, s37, {WSTR}
          s_add_u32 s7, s7, {C_STG}
          v_lshlrev_b32 v12, 4, v1
          v_add_u32 v12, s7, v12              ; lds x4
          v_lshlrev_b32 v13, 2, v1
          v_add_u32 v13, s7, v13
          v_add_u32 v13, 1024, v13            ; lds x1
          v_lshl_add_u32 v8, v4, 3, v5
          v_mul_u32_u24 v15, {WSTR}, v8
          v_lshl_add_u32 v15, v6, 3, v15      ; + 4c*2
          s_mul_i32 s7, s6, 320
          s_add_u32 s7, s7, {C_STG}
          v_add_u32 v15, s7, v15
          s_mul_i32 s7, s6, 20480
          s_add_u32 s7, s7, {C_WO}
          v_lshlrev_b32 v16, 4, v1
          v_add_u32 v16, s7, v16''')
    for kk in range(2):
        if kk == 0:
            for k2 in range(2):
                for rr in range(8):
                    A(f's_mov_b32 s38, {(k2*32+rr)*1280}')
                    A(f'buffer_load_dwordx4 v[{20+40*k2+4*rr}:{23+40*k2+4*rr}], v10, s[68:71], s38 offen')
                    A(f'buffer_load_dword v{52+40*k2+rr}, v11, s[68:71], s38 offen')
        A(f's_waitcnt vmcnt({16 if kk == 0 else 0})')
        for rr in range(8):
            A(f'ds_write_b128 v12, v[{20+40*kk+4*rr}:{23+40*kk+4*rr}] offset:{rr*WSTR}')
            A(f'ds_write_b32 v13, v{52+40*kk+rr} offset:{rr*WSTR}')
        A('s_waitcnt lgkmcnt(0)\ns_barrier')
        for T in range(10):
            for hf in range(2):
                A(f'ds_read_b64_tr_b16 v[{worg(T,kk)+2*hf}:{worg(T,kk)+2*hf+1}], v15 offset:{4*hf*WSTR + T*32}')
        A('s_waitcnt lgkmcnt(0)\ns_barrier')
    A('v_mov_b32 v2, v16')
    A(f'''v_min_u32 v7, 8, v3
          v_mul_u32_u24 v7, {MSTR}, v7
          v_lshl_add_u32 v7, v4, 4, v7
          v_add_u32 v7, {C_MEM}, v7''')
    A(f'''v_lshl_add_u32 v8, v5, 3, v6
          v_lshlrev_b32 v8, 13, v8
          v_lshl_add_u32 v8, v4, 4, v8
          s_lshl_b32 s7, s4, 8
          s_lshl_b32 s37, s6, 6
          s_add_u32 s7, s7, s37
          s_add_u32 s7, s7, {KX}
          v_add_u32 v8, s7, v8''')
    A(f'''v_lshl_add_u32 v9, v5, 3, v6
          v_lshlrev_b32 v9, 6, v9
          v_lshl_add_u32 v9, v4, 4, v9
          s_lshl_b32 s7, s4, 13
          s_lshl_b32 s37, s5, 12
          s_add_u32 s7, s7, s37
          s_add_u32 s7, s7, {VXT}
          v_add_u32 v9, s7, v9''')
    A(f'''v_and_b32 v20, 7, v3
          v_lshl_add_u32 v10, v4, 3, v20
          v_lshlrev_b32 v10, 4, v10
          v_lshrrev_b32 v20, 3, v3
          v_lshl_add_u32 v10, v20, 9, v10
          s_mul_i32 s7, s3, 20480
          s_mul_i32 s37, s6, 5120
          s_add_u32 s7, s7, s37
          s_add_u32 s7, s7, {PART}
          v_add_u32 v10, s7, v10''')
    A(f'''v_lshrrev_b32 v11, 3, v1
          v_mul_u32_u24 v11, 20480, v11
          v_and_b32 v20, 7, v1
          v_lshl_add_u32 v11, v20, 4, v11
          s_lshl_b32 s7, s6, 7
          s_lshl_b32 s37, s3, 9
          s_add_u32 s7, s7, s37
          s_add_u32 s7, s7, {PART}
          v_add_u32 v11, s7, v11''')
    A(f'''v_lshlrev_b32 v12, 3, v1
          s_lshl_b32 s7, s3, 9
          s_lshl_b32 s37, s6, 7
          s_add_u32 s7, s7, s37
          s_add_u32 s7, s7, {MEMB}
          v_add_u32 v12, s7, v12
          v_cmp_lt_u32 vcc, 7, v1
          v_mov_b32 v20, 0x7ff00000
          s_nop 1
          v_cndmask_b32 v12, v12, v20, vcc''')
    A(f'''v_lshrrev_b32 v13, 3, v0
          v_lshlrev_b32 v13, 7, v13
          v_and_b32 v20, 7, v0
          v_lshl_add_u32 v13, v20, 3, v13
          v_add_u32 v13, {MEMB}, v13''')
    for k in range(5):
        A(f'''v_add_u32 v20, {k*256}, v0
              v_mul_u32_u24 v21, 52429, v20
              v_lshrrev_b32 v21, 23, v21          ; i = idx/160
              v_mul_u32_u24 v22, 160, v21
              v_sub_u32 v22, v20, v22
              v_mul_u32_u24 v21, {MSTR}, v21
              v_lshl_add_u32 v21, v22, 3, v21
              v_add_u32 v{96+k}, {C_MEM}, v21
              v_and_b32 v21, 7, v20
              v_lshrrev_b32 v22, 3, v20
              v_mul_u32_u24 v21, {MSTR}, v21
              v_lshl_add_u32 v21, v22, 3, v21
              v_add_u32 v{104+k}, {C_MEM}, v21''')
    A(f'''v_lshlrev_b32 v14, 8, v3
          v_lshl_add_u32 v14, v4, 4, v14
          s_lshl_b32 s7, s4, 11
          s_lshl_b32 s37, s6, 6
          s_add_u32 s7, s7, s37
          s_add_u32 s7, s7, {KM}
          s_cmp_eq_u32 s5, 0
          s_cselect_b32 s7, s7, 0x7ff00000
          v_add_u32 v14, s7, v14
          v_cmp_lt_u32 vcc, 7, v3
          v_mov_b32 v20, 0x7ff00000
          s_nop 1
          v_cndmask_b32 v14, v14, v20, vcc''')
    A(f'''v_lshl_add_u32 v15, v5, 3, v6
          v_lshlrev_b32 v15, 4, v15
          v_lshl_add_u32 v15, v4, 3, v15
          s_lshl_b32 s7, s4, 11
          s_lshl_b32 s37, s5, 10
          s_add_u32 s7, s7, s37
          s_lshr_b32 s37, s6, 1
          s_lshl_b32 s37, s37, 9
          s_add_u32 s7, s7, s37
          s_and_b32 s37, s6, 1
          s_lshl_b32 s37, s37, 6
          s_add_u32 s7, s7, s37
          s_add_u32 s7, s7, {VMT}
          v_add_u32 v15, s7, v15
          v_cmp_lt_u32 vcc, 1, v4
          v_mov_b32 v20, 0x7ff00000
          s_nop 1
          v_cndmask_b32 v15, v15, v20, vcc''')
    A(f'''v_lshlrev_b32 v110, 4, v1
          s_mul_i32 s7, s6, 3072
          s_add_u32 s7, s7, {C_SC}
          v_add_u32 v109, s7, v110
          v_mov_b32 v111, 1
          s_mov_b32 s76, 0
          s_mov_b32 s77, -1
          s_mov_b32 s78, 0xfffffffe
          s_mov_b32 s79, 0              ; step
          s_mov_b32 s80, 0              ; seg*32*8192
          s_mov_b32 s81, {4*8192}       ; seg*32*8192 + 4*8192
          s_mov_b32 s82, 0              ; seg*65536
          s_mov_b32 s83, 0              ; step*10240
          s_mov_b32 s87, 4096
          s_mov_b32 s88, 8192
          s_mov_b32 s86, 4096
          s_mov_b32 s89, 8192''')
    if ADAPT:
        A(f'''s_mov_b32 s93, {2*D1}
              s_cmp_lt_u32 s3, 40
              s_cselect_b32 s94, {2*D2}, {2*D3}''')
    A(f'''v_mov_b32 v20, 0
          v_mov_b32 v21, 0
          v_lshlrev_b32 v22, 3, v0
          v_add_u32 v22, {C_MEM + 8*MSTR}, v22
          v_cmp_gt_u32 vcc, 160, v0
          s_and_saveexec_b64 s[84:85], vcc
          ds_write_b64 v22, v[20:21]
          s_mov_b64 exec, s[84:85]
          v_lshlrev_b32 v22, 3, v0''')
    for k in range(5):
        A(f'buffer_load_dwordx2 v[{24+2*k}:{25+2*k}], v22, s[72:75], {["0","0","s86","s86","s89"][k]} offen offset:{(k&1)*2048}')
    def kv_prefetch():
        A(f'''buffer_load_dwordx4 v[56:59], v8, s[16:19], s80 offen sc1
              buffer_load_dwordx4 v[60:63], v8, s[16:19], s81 offen sc1''')
        for pt in range(4):
            A(f'buffer_load_dwordx4 v[{64+4*pt}:{67+4*pt}], v9, s[16:19], s80 offen offset:{(32*(pt>>1)+4*(pt&1))*64} sc1')
    Lend = A.newlabel('cend')
    if FUSED:
        A('s_waitcnt vmcnt(0)')
        for (srdn, off, tgt) in (('s[96:99]', 128, 64), ('s[16:19]', cnt_addr(CKV), 64)):
            Lw = A.newlabel('cw')
            A(f'v_mov_b32 v40, {off}\ns_mov_b32 s90, 0')
            A.label(Lw)
            A(f'''s_add_u32 s90, s90, 1
                  s_cmp_gt_u32 s90, 400000
                  s_cbranch_scc1 {Lend}
                  buffer_load_dword v41, v40, {srdn}, 0 offen sc1
                  s_waitcnt vmcnt(0)
                  v_readfirstlane_b32 s7, v41
                  s_cmp_ge_u32 s7, {tgt}
                  s_cbranch_scc0 {Lw}''')
    kv_prefetch()
    A('s_waitcnt vmcnt(6)')
    for k in range(5):
        A(f'ds_write_b64 v{96+k}, v[{24+2*k}:{25+2*k}]')
    Ltop = A.newlabel('ctop'); Lnored = A.newlabel('cnored'); Lfin = A.newlabel('cfin')
    if PROF:
        for i in range(6): A(f's_mov_b32 s{92+i}, 0')
        A('s_memtime s[98:99]\ns_waitcnt lgkmcnt(0)\ns_mov_b32 s91, s98')
    A.label(Ltop)
    A('s_waitcnt lgkmcnt(0)\ns_barrier')
    if FUSED:
        Lnp0 = A.newlabel('nprog')
        A(f'''s_or_b32 s7, s3, s6
              s_cmp_lg_u32 s7, 0
              s_cbranch_scc1 {Lnp0}
              v_mov_b32 v54, s79
              v_mov_b32 v55, {cnt_addr(CPROG)}
              buffer_store_dword v54, v55, s[16:19], 0 offen sc1''')
        A.label(Lnp0)
    if TRACE:
        A(f'''s_memrealtime s[100:101]
              s_waitcnt lgkmcnt(0)
              v_mov_b32 v54, s100
              s_lshl_b32 s7, s79, 2
              s_lshl_b32 s101, s3, 8
              s_add_u32 s7, s7, s101
              s_add_u32 s7, s7, {TRC}
              v_mov_b32 v55, s7
              buffer_store_dword v54, v55, s[16:19], 0 offen''')
    stamp(A, 5)
    if FUSED:
        A(f'''s_add_u32 s7, s79, 1
              s_lshr_b32 s7, s7, 2
              s_lshl_b32 s7, s7, 6
              s_add_u32 s91, s7, {cnt_addr(CKV)}
              v_mov_b32 v54, s91
              buffer_load_dword v55, v54, s[16:19], 0 offen sc1''')
    for i in range(20): A(f'v_mov_b32 v{16+i}, 0')
    for kk in range(2):
        A(f'ds_read_b128 v[{36+4*kk}:{39+4*kk}], v7 offset:{kk*64}\nds_read_b128 v[{80+4*kk}:{83+4*kk}], v2 offset:{kk*1024}')
    for kk in range(20):
        cur = 4*(kk%3); nxt = 4*((kk+2)%3)
        if kk < 18:
            A(f'ds_read_b128 v[{36+nxt}:{39+nxt}], v7 offset:{(kk+2)*64}')
            A(f'ds_read_b128 v[{80+nxt}:{83+nxt}], v2 offset:{(kk+2)*1024}')
            A('s_waitcnt lgkmcnt(4)')
        else:
            A(f's_waitcnt lgkmcnt({2*(19-kk)})')
        for tile in range(4):
            A(f'v_mfma_f32_16x16x32_bf16 v[{16+4*tile}:{19+4*tile}], {wr4(tile*20+kk)}, v[{36+cur}:{39+cur}], v[{16+4*tile}:{19+4*tile}]')
        A(f'v_mfma_f32_16x16x32_bf16 v[32:35], v[{36+cur}:{39+cur}], v[{80+cur}:{83+cur}], v[32:35]')
    A('s_nop 3')
    stamp(A, 0)
    A('''v_cvt_pk_bf16_f32 v48, v24, v25
         v_cvt_pk_bf16_f32 v49, v26, v27
         v_cvt_pk_bf16_f32 v44, v16, v17
         v_cvt_pk_bf16_f32 v45, v18, v19
         v_cvt_pk_bf16_f32 v46, v20, v21
         v_cvt_pk_bf16_f32 v47, v22, v23
         v_cvt_pk_bf16_f32 v50, v28, v29
         v_cvt_pk_bf16_f32 v51, v30, v31
         v_cvt_pk_bf16_f32 v52, v32, v33
         v_cvt_pk_bf16_f32 v53, v34, v35''')
    A(f's_cmp_eq_u32 s79, 63\ns_cbranch_scc1 {Lfin}')
    A(f'''s_lshl_b32 s7, s6, 9
          v_lshlrev_b32 v54, 3, v1
          v_add_u32 v54, s7, v54
          ds_write_b64 v54, v[52:53] offset:{C_VM}''')
    A('s_waitcnt vmcnt(0)')
    if FUSED: A('v_readfirstlane_b32 s92, v55')
    A('''v_mfma_f32_16x16x32_bf16 v[80:83], v[48:51], v[44:47], 0
         v_mfma_f32_16x16x32_bf16 v[84:87], v[56:59], v[44:47], 0
         v_mfma_f32_16x16x32_bf16 v[88:91], v[60:63], v[44:47], 0
         s_nop 5
         ds_write_b128 v109, v[80:83]
         ds_write_b128 v109, v[84:87] offset:1024
         ds_write_b128 v109, v[88:91] offset:2048
         buffer_store_dwordx4 v[48:51], v14, s[16:19], s82 offen sc1
         buffer_store_dwordx2 v[52:53], v15, s[16:19], s82 offen sc1
         s_waitcnt lgkmcnt(0)
         s_barrier''')
    stamp(A, 1)
    for w in range(4):
        for t in range(3):
            A(f'ds_read_b128 v[{16+12*w+4*t}:{19+12*w+4*t}], v110 offset:{C_SC + w*3072 + t*1024}')
    A('s_waitcnt lgkmcnt(6)')
    for i in range(0, 12, 2): A(f'v_pk_add_f32 v[{80+i}:{81+i}], v[{16+i}:{17+i}], v[{28+i}:{29+i}]')
    A('s_waitcnt lgkmcnt(0)')
    for i in range(0, 12, 2): A(f'v_pk_add_f32 v[{40+i}:{41+i}], v[{40+i}:{41+i}], v[{52+i}:{53+i}]')
    for i in range(0, 12, 2): A(f'v_pk_add_f32 v[{80+i}:{81+i}], v[{80+i}:{81+i}], v[{40+i}:{41+i}]')
    A('v_lshlrev_b32 v54, 3, v1')
    for pt in range(4):
        A(f'ds_read_b64 v[{16+2*pt}:{17+2*pt}], v54 offset:{C_VM + pt*512}')
    round_scale12(A, 80, 92)
    A('v_mov_b32 v92, 0xff800000')
    for i in range(4): A(f'v_cndmask_b32 v{80+i}, v{80+i}, v92, s[76:77]')
    softmax12(A, 80, 92)
    A('''v_cvt_pk_bf16_f32 v48, v80, v81
         v_cvt_pk_bf16_f32 v49, v82, v83
         v_cvt_pk_bf16_f32 v44, v84, v85
         v_cvt_pk_bf16_f32 v45, v86, v87
         v_cvt_pk_bf16_f32 v46, v88, v89
         v_cvt_pk_bf16_f32 v47, v90, v91
         s_waitcnt lgkmcnt(0)
         s_nop 0''')
    for pt in range(4):
        A(f'v_mfma_f32_16x16x32_bf16 v[{80+4*pt}:{83+4*pt}], v[{64+4*pt}:{67+4*pt}], v[44:47], 0')
    for pt in range(4):
        A(f'v_mfma_f32_16x16x16_bf16 v[{80+4*pt}:{83+4*pt}], v[{16+2*pt}:{17+2*pt}], v[48:49], v[{80+4*pt}:{83+4*pt}]')
    A(f'''s_add_u32 s80, s80, {32*8192}
          s_add_u32 s81, s81, {32*8192}
          s_add_u32 s82, s82, 65536
          s_nop 1''')
    for pt in range(4):
        A(f'''v_cvt_pk_bf16_f32 v{96+2*pt}, v{80+4*pt}, v{81+4*pt}
              v_cvt_pk_bf16_f32 v{97+2*pt}, v{82+4*pt}, v{83+4*pt}''')
    A('s_nop 1')
    def accT(T): return 16+4*T
    for T in range(10):
        a = accT(T)
        A(f'v_mfma_f32_16x16x32_bf16 v[{a}:{a+3}], v[{worg(T,0)}:{worg(T,0)+3}], v[96:99], 0')
    def merged_store(P):
        a = accT(2*P); b = accT(2*P+1)
        for r in range(4): A(f'v_mov_b32_dpp v{a+r}, v{b+r} row_shr:8 row_mask:0xf bank_mask:0xc')
        for r in range(4): A(f'v_and_or_b32 v{a+r}, v{a+r}, s78, v111')
        A(f'buffer_store_dwordx4 v[{a}:{a+3}], v10, s[16:19], {"0" if P < 4 else "s86"} offen offset:{(P&3)*1024} sc1')
    for T in range(10):
        a = accT(T)
        A(f'v_mfma_f32_16x16x32_bf16 v[{a}:{a+3}], v[{worg(T,1)}:{worg(T,1)+3}], v[100:103], v[{a}:{a+3}]')
        if T in (5, 7, 9): merged_store((T-5)//2)
    A('s_nop 1')
    merged_store(3)
    merged_store(4)
    if FUSED:
        Lok = A.newlabel('cok'); Lw = A.newlabel('cw')
        A(f's_cmp_ge_u32 s92, 64\ns_cbranch_scc1 {Lok}\nv_mov_b32 v96, s91\ns_mov_b32 s90, 0')
        A.label(Lw)
        A(f'''s_add_u32 s90, s90, 1
              s_cmp_gt_u32 s90, 400000
              s_cbranch_scc1 {Lend}
              buffer_load_dword v97, v96, s[16:19], 0 offen sc1
              s_waitcnt vmcnt(0)
              v_readfirstlane_b32 s7, v97
              s_cmp_ge_u32 s7, 64
              s_cbranch_scc0 {Lw}''')
        A.label(Lok)
    kv_prefetch()
    stamp(A, 2)
    A(f's_cmp_ge_u32 s3, 40\ns_cbranch_scc1 {Lnored}')
    if ADAPT: dsleep(A, 93)
    else:
        for _ in range(D1): A('s_sleep 2')
    Lp = A.newlabel('cpollB')
    A('s_mov_b32 s90, 0')
    A.label(Lp)
    A(f's_add_u32 s90, s90, 1\ns_cmp_gt_u32 s90, 400000\ns_cbranch_scc1 {Lend}')
    for k in range(8):
        A(f's_mov_b32 s7, {k*8*20480}\nbuffer_load_dwordx4 v[{16+4*k}:{19+4*k}], v11, s[16:19], s7 offen sc1')
    A('s_waitcnt vmcnt(0)')
    Lodd = A.newlabel('codd'); Lrdy = A.newlabel('crdy')
    A(f's_bitcmp1_b32 s79, 0\ns_cbranch_scc1 {Lodd}')
    for i in range(0, 32, 4):
        A(f'v_and_b32 v{48+i//4}, v{16+i}, v{17+i}\nv_and_b32 v{96+i//4}, v{18+i}, v{19+i}')
    for i in range(8): A(f'v_and_b32 v{48+i}, v{48+i}, v{96+i}')
    A('''v_and_b32 v48, v48, v49
         v_and_b32 v50, v50, v51
         v_and_b32 v52, v52, v53
         v_and_b32 v54, v54, v55
         v_and_b32 v48, v48, v50
         v_and_b32 v52, v52, v54
         v_and_b32 v48, v48, v52
         v_and_b32 v48, 1, v48
         v_cmp_eq_u32 vcc, 0, v48''')
    A(f's_and_b64 exec, exec, vcc\ns_cbranch_execnz {Lp}\ns_branch {Lrdy}')
    A.label(Lodd)
    for i in range(0, 30, 3): A(f'v_or3_b32 v{48+i//3 if i//3 < 8 else 96+i//3-8}, v{16+i}, v{17+i}, v{18+i}')
    A('''v_or3_b32 v48, v48, v49, v50
         v_or3_b32 v51, v51, v52, v53
         v_or3_b32 v54, v54, v55, v96
         v_or3_b32 v97, v97, v46, v47
         v_or3_b32 v48, v48, v51, v54
         v_or_b32 v48, v48, v97
         v_and_b32 v48, 1, v48
         v_cmp_ne_u32 vcc, 0, v48''')
    A(f's_and_b64 exec, exec, vcc\ns_cbranch_execnz {Lp}')
    A.label(Lrdy)
    A('s_mov_b64 exec, -1')
    if ADAPT: dadapt(A, 93)
    for k in range(0, 16, 2): A(f'v_pk_add_f32 v[{16+k}:{17+k}], v[{16+k}:{17+k}], v[{32+k}:{33+k}]')
    for k in range(0, 8, 2): A(f'v_pk_add_f32 v[{16+k}:{17+k}], v[{16+k}:{17+k}], v[{24+k}:{25+k}]')
    for k in range(0, 4, 2): A(f'v_pk_add_f32 v[{16+k}:{17+k}], v[{16+k}:{17+k}], v[{20+k}:{21+k}]')
    for r in range(4): A(f'v_mov_b32 v{20+r}, v{16+r}')
    A('s_nop 1')
    for r in range(4): A(f'v_permlane32_swap_b32 v{16+r}, v{20+r}')
    for r in range(0, 4, 2): A(f'v_pk_add_f32 v[{16+r}:{17+r}], v[{16+r}:{17+r}], v[{20+r}:{21+r}]')
    for r in range(4): A(f'v_mov_b32 v{20+r}, v{16+r}')
    A('s_nop 1')
    for r in range(4): A(f'v_permlane16_swap_b32 v{16+r}, v{20+r}')
    for r in range(0, 4, 2): A(f'v_pk_add_f32 v[{16+r}:{17+r}], v[{16+r}:{17+r}], v[{20+r}:{21+r}]')
    A('s_nop 1')
    for r in range(4): A(f'v_add_f32_dpp v{16+r}, v{16+r}, v{16+r} row_ror:8 row_mask:0xf bank_mask:0xf')
    Lnp = A.newlabel('cnopub')
    A('''v_cvt_pk_bf16_f32 v20, v16, v17
         v_cvt_pk_bf16_f32 v21, v18, v19
         v_mov_b32 v22, 0x7fff7fff
         v_cmp_eq_u32 vcc, -1, v20
         s_nop 1
         v_cndmask_b32 v20, v20, v22, vcc
         v_cmp_eq_u32 vcc, -1, v21
         s_nop 1
         v_cndmask_b32 v21, v21, v22, vcc
         buffer_store_dwordx2 v[20:21], v12, s[16:19], s83 offen sc1''')
    A.label(Lnp)
    Lgo = A.newlabel('cgo')
    if ADAPT:
        A.label(Lnored)
        dsleep(A, 94)
    else:
        for _ in range(D2): A('s_sleep 2')
        A(f's_branch {Lgo}')
        A.label(Lnored)
        for _ in range(D3): A('s_sleep 2')
    A.label(Lgo)
    stamp(A, 3)
    Lg = A.newlabel('cpollA')
    A('s_mov_b32 s90, 0')
    A.label(Lg)
    A(f's_add_u32 s90, s90, 1\ns_cmp_gt_u32 s90, 400000\ns_cbranch_scc1 {Lend}')
    for k in range(5):
        A(f's_add_u32 s7, s83, {k*4096}\nbuffer_load_dwordx2 v[{24+2*k}:{25+2*k}], v13, s[16:19], s7 offen sc1')
    A('s_waitcnt vmcnt(0)')
    A('v_cmp_eq_u32 vcc, -1, v24')
    for i in range(1, 10):
        A(f'v_cmp_eq_u32 s[84:85], -1, v{24+i}\ns_or_b64 vcc, vcc, s[84:85]')
    A(f's_and_b64 exec, exec, vcc\ns_cbranch_execnz {Lg}\ns_mov_b64 exec, -1')
    if ADAPT: dadapt(A, 94)
    stamp(A, 4)
    for k in range(5):
        A(f'ds_write_b64 v{104+k}, v[{24+2*k}:{25+2*k}]')
    def cch_signal():
        A(f'''s_lshl_b32 s7, s3, 4
              s_lshl_b32 s100, s6, 2
              s_add_u32 s7, s7, s100
              s_add_u32 s7, s7, {cnt_addr(CCH)}
              s_add_u32 s100, s79, 1
              v_mov_b32 v40, s100
              v_mov_b32 v41, s7
              v_cmp_eq_u32 vcc, 0, v1
              s_and_saveexec_b64 s[84:85], vcc
              buffer_store_dword v40, v41, s[16:19], 0 offen sc1
              s_mov_b64 exec, s[84:85]''')
    if FUSED: cch_signal()
    A(f'''s_add_u32 s79, s79, 1
          s_add_u32 s83, s83, 20480
          s_add_u32 s87, s87, 10240
          s_add_u32 s88, s88, 10240
          v_xor_b32 v111, 1, v111
          s_branch {Ltop}''')
    A.label(Lfin)
    A('''buffer_store_dwordx4 v[48:51], v14, s[16:19], s82 offen sc1
         buffer_store_dwordx2 v[52:53], v15, s[16:19], s82 offen sc1''')
    if FUSED:
        A('s_waitcnt vmcnt(0)')
        cch_signal()
    A.label(Lend)
    A('s_mov_b64 exec, -1')
    if PROF:
        for i in range(6): A(f'v_mov_b32 v{16+i}, s{92+i}')
        A(f'''s_lshl_b32 s7, s3, 7
              s_lshl_b32 s37, s6, 5
              s_add_u32 s7, s7, s37
              s_add_u32 s7, s7, {FLAGS}
              v_mov_b32 v24, s7
              buffer_store_dwordx4 v[16:19], v24, s[16:19], 0 offen
              buffer_store_dwordx2 v[20:21], v24, s[16:19], 0 offen offset:16''')

def task_init(A):
    A(f'''s_lshl_b32 s4, s3, 12
          v_lshlrev_b32 v1, 4, v0
          v_add_u32 v1, s4, v1
          v_mov_b32 v4, 0
          v_mov_b32 v5, 0
          v_mov_b32 v6, 0
          v_mov_b32 v7, 0
          v_mov_b32 v8, -1
          v_mov_b32 v9, -1
          v_mov_b32 v10, -1
          v_mov_b32 v11, -1''')
    for p in range(5):
        A(f's_mov_b32 s5, {PART + p*262144}\nbuffer_store_dwordx4 v[4:7], v1, s[16:19], s5 offen')
    for p in range(3):
        A(f's_mov_b32 s5, {MEMB + p*262144}\nbuffer_store_dwordx4 v[8:11], v1, s[16:19], s5 offen')

if __name__ == '__main__':
    build([('init_kernel', 64, 0, task_init, (256, 256)),
           ('proj_kernel', 1536, P_LDS, task_P, (256, 256)),
           ('chain_kernel', 64, C_LDS, task_chain, (512, 256))], 't2.s')
    print('C_LDS', C_LDS)
```

```python
from asmlib import *
from layout import *
from gen import *
O2_W = 4608
O2_WAVE = 4608 + 9216
O2_LDS = 4*O2_WAVE
PSPL = 112*MB
CSPL = 256
def task_O2(A, split=False, mid=None):
    srd(A, 12, I_WO, 4096*1280)
    if split:
        A('s_and_b32 s39, s3, 3\ns_lshr_b32 s3, s3, 2')
    A('''s_mul_i32 s30, s3, 52429
         s_lshr_b32 s30, s30, 19            ; seg = s3/10
         s_mul_i32 s31, s30, 10
         s_sub_u32 s31, s3, s31             ; ct
         v_and_b32 v7, 63, v0
         v_lshrrev_b32 v20, 6, v0
         s_nop 0
         v_readfirstlane_b32 s6, v20
         v_and_b32 v24, 15, v7
         v_lshrrev_b32 v25, 4, v7
         v_lshrrev_b32 v26, 2, v24
         v_and_b32 v27, 3, v24''')
    A(f'''s_mul_i32 s32, s6, {O2_WAVE}
          v_lshrrev_b32 v20, 3, v7
          v_and_b32 v21, 7, v7
          v_mul_u32_u24 v3, 144, v20
          v_lshl_add_u32 v3, v21, 4, v3
          v_add_u32 v3, s32, v3
          s_lshl_b32 s7, s30, 5
          v_add_u32 v28, s7, v20
          v_lshlrev_b32 v8, 13, v28
          v_lshl_add_u32 v8, v21, 4, v8
          {'s_lshl_b32 s7, s6, 11' if not split else 's_lshl_b32 s7, s39, 2'}
          {'' if not split else 's_add_u32 s7, s7, s6'}
          {'' if not split else 's_mov_b32 s38, s7'}
          {'' if not split else 's_lshl_b32 s7, s7, 9'}
          s_add_u32 s7, s7, {OX}
          v_add_u32 v8, s7, v8
          v_add_u32 v9, 0x10000, v8
          v_add_u32 v10, 0x20000, v8
          v_add_u32 v11, 0x30000, v8
          v_mul_u32_u24 v12, 1280, v20
          v_lshl_add_u32 v12, v21, 4, v12
          {'s_mul_i32 s7, s6, %d' % (1024*1280) if not split else 's_mul_i32 s7, s38, %d' % (256*1280)}
          s_lshl_b32 s33, s31, 7
          s_add_u32 s7, s7, s33
          v_add_u32 v12, s7, v12
          v_lshl_add_u32 v28, v26, 3, v27
          v_mul_u32_u24 v5, 144, v28
          v_lshl_add_u32 v5, v25, 4, v5
          v_add_u32 v5, s32, v5
          v_lshl_add_u32 v28, v25, 3, v26
          v_mul_u32_u24 v6, 144, v28
          v_lshl_add_u32 v6, v27, 4, v6
          v_add_u32 v6, s32, v6
          v_add_u32 v6, {O2_W}, v6
          s_mov_b32 s34, 0
          s_mov_b32 s35, 0''')
    sets = [('v', 128), ('a', 0), ('a', 48), ('a', 96)]
    def R(st, i): return f'{sets[st][0]}[{sets[st][1]+4*i}:{sets[st][1]+4*i+3}]'
    def issue(st):
        for p in range(4):
            A(f'buffer_load_dwordx4 {R(st,p)}, v{8+p}, s[16:19], s34 offen sc1')
        for p in range(8):
            A(f's_add_u32 s36, s35, {p*8*1280}\nbuffer_load_dwordx4 {R(st,4+p)}, v12, s[12:15], s36 offen')
        A(f's_add_u32 s34, s34, 128\ns_add_u32 s35, s35, {64*1280}')
    def wlds(st):
        for p in range(4): A(f'ds_write_b128 v3, {R(st,p)} offset:{p*8*144}')
        for p in range(8): A(f'ds_write_b128 v3, {R(st,4+p)} offset:{O2_W + p*8*144}')
    for i in range(32): A(f'v_mov_b32 v{64+i}, 0')
    if not split:
        for st in range(4): issue(st)
    else:
        for st in range(4):
            for p in range(8):
                A(f's_mov_b32 s36, {(st*64+p*8)*1280}\nbuffer_load_dwordx4 {R(st,4+p)}, v12, s[12:15], s36 offen')
        if mid: mid()
        for st in range(4):
            for p in range(4):
                A(f'buffer_load_dwordx4 {R(st,p)}, v{8+p}, s[16:19], 0 offen offset:{st*128} sc1')
    A('s_mov_b32 s5, 0')
    L = A.newlabel('o2l'); A.label(L)
    def body(last):
      for st in range(4):
        A(f's_waitcnt vmcnt({36 if not last else (12 if not split else 4)*(3-st)})')
        wlds(st)
        for kk in range(2):
            for mt in range(2):
                A(f'ds_read_b128 v[{16+4*mt+8*kk}:{19+4*mt+8*kk}], v5 offset:{4*mt*144 + kk*64}')
            for nt in range(4):
                for hf in range(2):
                    off = (kk*32+4*hf)*144 + (32*(nt>>1)+4*(nt&1))*2
                    A(f'ds_read_b64_tr_b16 v[{32+16*kk+4*nt+2*hf}:{33+16*kk+4*nt+2*hf}], v6 offset:{off}')
        A('s_waitcnt lgkmcnt(0)')
        if not last: issue(st)
        for kk in range(2):
            for nt in range(4):
                for mt in range(2):
                    acc = 64 + 4*(nt*2+mt)
                    A(f'v_mfma_f32_16x16x32_bf16 v[{acc}:{acc+3}], v[{32+16*kk+4*nt}:{35+16*kk+4*nt}], v[{16+4*mt+8*kk}:{19+4*mt+8*kk}], v[{acc}:{acc+3}]')
    if not split:
        body(False)
        A(f's_add_u32 s5, s5, 1\ns_cmp_lt_u32 s5, 3\ns_cbranch_scc1 {L}')
    body(True)
    A('s_nop 7\ns_barrier')
    A('''v_and_b32 v24, 15, v7
         v_lshrrev_b32 v25, 4, v7
         v_lshrrev_b32 v26, 2, v24
         v_and_b32 v27, 3, v24''')
    A(f'''s_lshl_b32 s7, s6, 13
          v_lshlrev_b32 v3, 4, v7
          v_add_u32 v4, s7, v3''')
    for t in range(8): A(f'ds_write_b128 v4, v[{64+4*t}:{67+4*t}] offset:{t*1024}')
    A('s_waitcnt lgkmcnt(0)\ns_barrier')
    A('''s_lshr_b32 s37, s6, 1
         s_and_b32 s38, s6, 1
         s_lshl_b32 s7, s37, 12
         s_lshl_b32 s36, s38, 10
         s_add_u32 s7, s7, s36
         v_add_u32 v4, s7, v3''')
    for ww in range(4):
        for t in range(2):
            A(f'ds_read_b128 v[{64+8*ww+4*t}:{67+8*ww+4*t}], v4 offset:{ww*8192 + t*2048}')
    A(f'''v_lshl_add_u32 v28, v26, 3, v27
          s_lshl_b32 s7, s30, 5
          s_lshl_b32 s36, s38, 2
          s_add_u32 s7, s7, s36
          v_add_u32 v28, s7, v28
          v_lshlrev_b32 v30, 3, v28
          v_add_u32 v30, {GBUF}, v30
          v_mul_u32_u24 v29, 1280, v28
          v_lshl_add_u32 v29, v25, 4, v29
          s_lshl_b32 s7, s31, 7
          s_lshl_b32 s36, s37, 6
          s_add_u32 s7, s7, s36
          v_add_u32 v29, s7, v29
          s_mov_b32 s36, {ABUF}
          buffer_load_dwordx2 v[100:101], v30, s[16:19], 0 offen sc1
          buffer_load_dwordx4 v[104:107], v29, s[16:19], s36 offen sc1
          s_waitcnt lgkmcnt(0)''')
    for i in range(0, 8, 2):
        A(f'''v_pk_add_f32 v[{64+i}:{65+i}], v[{64+i}:{65+i}], v[{72+i}:{73+i}]
              v_pk_add_f32 v[{80+i}:{81+i}], v[{80+i}:{81+i}], v[{88+i}:{89+i}]''')
    for i in range(0, 8, 2):
        A(f'v_pk_add_f32 v[{64+i}:{65+i}], v[{64+i}:{65+i}], v[{80+i}:{81+i}]')
    Ldone = A.newlabel('o2done')
    if split:
        A(f'''s_lshl_b32 s7, s3, 2
              s_add_u32 s7, s7, s39
              s_lshl_b32 s7, s7, 13
              s_add_u32 s7, s7, {PSPL}
              v_lshlrev_b32 v3, 5, v0
              buffer_store_dwordx4 v[64:67], v3, s[16:19], s7 offen sc1
              buffer_store_dwordx4 v[68:71], v3, s[16:19], s7 offen offset:16 sc1
              s_waitcnt vmcnt(0)
              s_barrier
              v_mov_b32 v4, 1
              s_lshl_b32 s7, s3, 2
              s_add_u32 s7, s7, {FLAGS + 16384}
              v_mov_b32 v5, s7
              v_cmp_eq_u32 vcc, 0, v0
              s_and_saveexec_b64 s[84:85], vcc
              s_cbranch_execz .Lo2sk
              buffer_atomic_add v4, v5, s[16:19], 0 offen sc0
              s_waitcnt vmcnt(0)
              v_mov_b32 v5, 151000
              ds_write_b32 v5, v4''')
        A.label('.Lo2sk')
        A(f'''s_mov_b64 exec, s[84:85]
              s_waitcnt lgkmcnt(0)
              s_barrier
              v_mov_b32 v5, 151000
              ds_read_b32 v4, v5
              s_waitcnt lgkmcnt(0)
              v_readfirstlane_b32 s7, v4
              s_cmp_lg_u32 s7, 3
              s_cbranch_scc1 {Ldone}
              s_lshl_b32 s7, s3, 15
              s_add_u32 s7, s7, {PSPL}''')
        for q in range(4):
            A(f'''buffer_load_dwordx4 v[{64+8*q}:{67+8*q}], v3, s[16:19], s7 offen sc1
                  buffer_load_dwordx4 v[{68+8*q}:{71+8*q}], v3, s[16:19], s7 offen offset:16 sc1
                  s_add_u32 s7, s7, 8192''')
        A('s_waitcnt vmcnt(0)')
        for i in range(0, 8, 2):
            A(f'''v_pk_add_f32 v[{64+i}:{65+i}], v[{64+i}:{65+i}], v[{72+i}:{73+i}]
                  v_pk_add_f32 v[{80+i}:{81+i}], v[{80+i}:{81+i}], v[{88+i}:{89+i}]''')
        for i in range(0, 8, 2):
            A(f'v_pk_add_f32 v[{64+i}:{65+i}], v[{64+i}:{65+i}], v[{80+i}:{81+i}]')
    A('s_waitcnt vmcnt(0)')
    for j in range(4):
        a = 64 + 2*j
        A(f'''v_cvt_pk_bf16_f32 v16, v{a}, v{a+1}
              v_lshlrev_b32 v17, 16, v16
              v_and_b32 v18, 0xffff0000, v16
              v_mul_f32 v17, v17, v101
              v_mul_f32 v18, v18, v101
              v_cvt_pk_bf16_f32 v16, v17, v18
              v_lshlrev_b32 v17, 16, v{104+j}
              v_and_b32 v18, 0xffff0000, v{104+j}
              v_mul_f32 v17, v17, v100
              v_mul_f32 v18, v18, v100
              v_cvt_pk_bf16_f32 v19, v17, v18
              v_lshlrev_b32 v17, 16, v16
              v_and_b32 v18, 0xffff0000, v16
              v_lshlrev_b32 v20, 16, v19
              v_and_b32 v21, 0xffff0000, v19
              v_add_f32 v17, v17, v20
              v_add_f32 v18, v18, v21
              v_cvt_pk_bf16_f32 v{32+j}, v17, v18''')
    A('buffer_store_dwordx4 v[32:35], v29, s[20:23], 0 offen')
    A.label(Ldone)
```

```python
from asmlib import *
from layout import *
from gen import *

def softmax12(A, S, t0):
    a,b,c,d,e,f = range(t0, t0+6)
    A(f'''v_max3_f32 v{a}, v{S}, v{S+1}, v{S+2}
         v_max3_f32 v{b}, v{S+3}, v{S+4}, v{S+5}
         v_max3_f32 v{c}, v{S+6}, v{S+7}, v{S+8}
         v_max3_f32 v{d}, v{S+9}, v{S+10}, v{S+11}
         v_max3_f32 v{a}, v{a}, v{b}, v{c}
         v_max_f32 v{a}, v{a}, v{d}
         v_mov_b32 v{b}, v{a}
         s_nop 1
         v_permlane32_swap_b32 v{a}, v{b}
         v_max_f32 v{a}, v{a}, v{b}
         v_mov_b32 v{b}, v{a}
         s_nop 1
         v_permlane16_swap_b32 v{a}, v{b}
         v_max_f32 v{a}, v{a}, v{b}''')
    A(f'''v_mul_f32 v{a}, 0xbfb8aa3b, v{a}
          v_mov_b32 v{b}, v{a}
          v_mov_b32 v{c}, 0x3fb8aa3b
          v_mov_b32 v{d}, 0x3fb8aa3b''')
    for i in range(0, 12, 2):
        A(f'v_pk_fma_f32 v[{S+i}:{S+i+1}], v[{S+i}:{S+i+1}], v[{c}:{d}], v[{a}:{b}]')
    for i in range(12):
        A(f'v_exp_f32 v{S+i}, v{S+i}')
    A(f'''s_nop 0
         v_pk_add_f32 v[{a}:{b}], v[{S}:{S+1}], v[{S+2}:{S+3}]
         v_pk_add_f32 v[{c}:{d}], v[{S+4}:{S+5}], v[{S+6}:{S+7}]
         v_pk_add_f32 v[{e}:{f}], v[{S+8}:{S+9}], v[{S+10}:{S+11}]
         v_pk_add_f32 v[{a}:{b}], v[{a}:{b}], v[{c}:{d}]
         v_pk_add_f32 v[{a}:{b}], v[{a}:{b}], v[{e}:{f}]
         v_add_f32 v{a}, v{a}, v{b}
         v_mov_b32 v{b}, v{a}
         s_nop 1
         v_permlane32_swap_b32 v{a}, v{b}
         v_add_f32 v{a}, v{a}, v{b}
         v_mov_b32 v{b}, v{a}
         s_nop 1
         v_permlane16_swap_b32 v{a}, v{b}
         v_add_f32 v{a}, v{a}, v{b}
         v_rcp_f32 v{a}, v{a}
         s_nop 0
         v_mov_b32 v{b}, v{a}''')
    for i in range(0, 12, 2): A(f'v_pk_mul_f32 v[{S+i}:{S+i+1}], v[{S+i}:{S+i+1}], v[{a}:{b}]')

def round_scale12(A, S, t0):
    a,b,c = t0, t0+1, t0+2
    for i in range(0, 12, 2):
        A(f'''v_cvt_pk_bf16_f32 v{a}, v{S+i}, v{S+i+1}
              v_lshlrev_b32 v{b}, 16, v{a}
              v_and_b32 v{c}, 0xffff0000, v{a}
              v_mul_f32 v{b}, 0x3db504f3, v{b}
              v_mul_f32 v{c}, 0x3db504f3, v{c}
              v_cvt_pk_bf16_f32 v{a}, v{b}, v{c}
              v_lshlrev_b32 v{S+i}, 16, v{a}
              v_and_b32 v{S+i+1}, 0xffff0000, v{a}''')

def task_T(A, mid=None):
    A('''v_and_b32 v1, 63, v0
         v_lshrrev_b32 v2, 6, v0
         s_nop 0
         v_readfirstlane_b32 s6, v2
         v_and_b32 v3, 15, v1
         v_lshrrev_b32 v4, 4, v1
         v_lshrrev_b32 v5, 2, v3
         v_and_b32 v6, 3, v3
         v_lshl_add_u32 v7, v5, 3, v6
         s_lshr_b32 s4, s3, 3                ; seg
         s_and_b32 s5, s3, 7
         s_lshl_b32 s5, s5, 2
         s_add_u32 s5, s5, s6                ; head''')
    A(f'''s_lshl_b32 s7, s4, 18
          s_lshl_b32 s30, s5, 8
          s_add_u32 s7, s7, s30               ; seg*32*8192 + h*256
          v_lshlrev_b32 v8, 13, v3
          v_lshl_add_u32 v8, v4, 4, v8
          v_add_u32 v8, s7, v8
          v_add_u32 v9, {16*8192}, v8
          v_lshlrev_b32 v10, 13, v7
          v_lshl_add_u32 v10, v4, 4, v10
          s_add_u32 s30, s7, {KX}
          v_add_u32 v10, s30, v10
          v_add_u32 v11, {4*8192}, v10''')
    for ks in range(4):
        A(f'buffer_load_dwordx4 v[{16+4*ks}:{19+4*ks}], v8, s[16:19], 0 offen offset:{ks*64} sc1')
        A(f'buffer_load_dwordx4 v[{32+4*ks}:{35+4*ks}], v9, s[16:19], 0 offen offset:{ks*64} sc1')
        A(f'buffer_load_dwordx4 v[{64+4*ks}:{67+4*ks}], v10, s[16:19], 0 offen offset:{ks*64} sc1')
        A(f'buffer_load_dwordx4 v[{80+4*ks}:{83+4*ks}], v11, s[16:19], 0 offen offset:{ks*64} sc1')
    A(f'''s_lshl_b32 s7, s4, 5
          s_add_u32 s7, s7, s5                ; seg*32+h
          s_lshl_b32 s30, s7, 11
          s_add_u32 s30, s30, {KM}
          v_and_b32 v12, 7, v3
          v_lshlrev_b32 v12, 8, v12
          v_lshl_add_u32 v12, v4, 4, v12
          v_add_u32 v12, s30, v12''')
    A(f'''s_lshl_b32 s30, s7, 13
          s_add_u32 s30, s30, {VXT}
          v_lshlrev_b32 v13, 6, v7
          v_lshl_add_u32 v13, v4, 4, v13
          v_add_u32 v13, s30, v13
          v_add_u32 v14, 4096, v13
          s_lshl_b32 s30, s7, 11
          s_add_u32 s30, s30, {VMT}
          v_lshlrev_b32 v15, 4, v7
          v_and_b32 v2, 1, v4
          v_lshl_add_u32 v15, v2, 3, v15
          v_add_u32 v15, s30, v15''')
    for et in range(8):
        pp, t = et >> 1, et & 1
        off = (32*pp + 4*t)*64
        A(f'buffer_load_dwordx4 v[{96+4*et}:{99+4*et}], v{13 if off < 4096 else 14}, s[16:19], 0 offen offset:{off & 4095} sc1')
    if mid: mid()
    for ks in range(4):
        A(f'buffer_load_dwordx4 v[{48+4*ks}:{51+4*ks}], v12, s[16:19], 0 offen offset:{ks*64} sc1')
    for et in range(8):
        pp, t = et >> 1, et & 1
        A(f'buffer_load_dwordx2 v[{128+2*et}:{129+2*et}], v15, s[16:19], 0 offen offset:{(32*pp+4*t)*16} sc1')
    A(f'''s_lshl_b32 s7, s4, 18
          s_lshl_b32 s30, s5, 8
          s_add_u32 s7, s7, s30
          s_add_u32 s7, s7, {OX}
          v_lshlrev_b32 v8, 13, v3
          v_lshl_add_u32 v8, v4, 4, v8
          v_add_u32 v8, s7, v8
          s_mov_b32 s76, 0
          s_mov_b32 s77, -1
          v_mov_b32 v9, 0xff800000
          v_lshlrev_b32 v10, 3, v4            ; 8g
          s_waitcnt vmcnt(8)''')
    for qt in range(2):
        S = 144 + 12*qt
        for ks in range(4):
            q = 16 + 16*qt + 4*ks
            for t, kb in enumerate((48, 64, 80)):
                c = '0' if ks == 0 else f'v[{S+4*t}:{S+4*t+3}]'
                A(f'v_mfma_f32_16x16x32_bf16 v[{S+4*t}:{S+4*t+3}], v[{kb+4*ks}:{kb+4*ks+3}], v[{q}:{q+3}], {c}')
    A('s_nop 7')
    for qt in range(2):
        S = 144 + 12*qt
        round_scale12(A, S, 170)
        for i in range(4): A(f'v_cndmask_b32 v{S+i}, v{S+i}, v9, s[76:77]')
        for t in (1, 2):
            for r in range(4):
                c = 4*(t-1) + r - 16*qt
                A(f'''v_add_u32 v170, {c & 0xffffffff}, v10
                      v_cmp_gt_i32 vcc, v170, v3
                      s_nop 1
                      v_cndmask_b32 v{S+4*t+r}, v{S+4*t+r}, v9, vcc''')
        softmax12(A, S, 170)
        P = 176 + 6*qt
        A(f'''v_cvt_pk_bf16_f32 v{P}, v{S}, v{S+1}
              v_cvt_pk_bf16_f32 v{P+1}, v{S+2}, v{S+3}
              v_cvt_pk_bf16_f32 v{P+2}, v{S+4}, v{S+5}
              v_cvt_pk_bf16_f32 v{P+3}, v{S+6}, v{S+7}
              v_cvt_pk_bf16_f32 v{P+4}, v{S+8}, v{S+9}
              v_cvt_pk_bf16_f32 v{P+5}, v{S+10}, v{S+11}''')
    A('s_waitcnt vmcnt(0)\ns_nop 1')
    for qt in range(2):
        P = 176 + 6*qt
        for et in range(8):
            o = 16 + 32*qt + 4*et
            A(f'v_mfma_f32_16x16x32_bf16 v[{o}:{o+3}], v[{96+4*et}:{99+4*et}], v[{P+2}:{P+5}], 0')
        for et in range(8):
            o = 16 + 32*qt + 4*et
            A(f'v_mfma_f32_16x16x16_bf16 v[{o}:{o+3}], v[{128+2*et}:{129+2*et}], v[{P}:{P+1}], v[{o}:{o+3}]')
    A('s_nop 7')
    A(f'v_add_u32 v11, {16*8192}, v8')
    for qt in range(2):
        for pp in range(4):
            o0 = 16 + 32*qt + 8*pp; o1 = o0 + 4
            A(f'''v_cvt_pk_bf16_f32 v144, v{o0}, v{o0+1}
                  v_cvt_pk_bf16_f32 v145, v{o0+2}, v{o0+3}
                  v_cvt_pk_bf16_f32 v146, v{o1}, v{o1+1}
                  v_cvt_pk_bf16_f32 v147, v{o1+2}, v{o1+3}
                  buffer_store_dwordx4 v[144:147], v{8 if qt == 0 else 11}, s[16:19], 0 offen offset:{pp*64} sc1
                  s_nop 1''')

def task_G(A):
    srd(A, 24, I_GATE, 1280)
    A('''v_and_b32 v1, 63, v0
         v_lshrrev_b32 v2, 6, v0
         s_nop 0
         v_readfirstlane_b32 s6, v2
         v_lshlrev_b32 v3, 2, v1''')
    for k in range(5): A(f'buffer_load_dword v{8+k}, v3, s[24:27], 0 offen offset:{k*256}')
    A('''s_lshl_b32 s4, s3, 5
         s_lshl_b32 s5, s6, 3
         s_add_u32 s4, s4, s5
         s_mul_i32 s5, s4, 1280''')
    for r in range(8):
        for k in range(5): A(f'buffer_load_dword v{32+5*r+k}, v3, s[8:11], s5 offen offset:{k*256}')
        A('s_add_u32 s5, s5, 1280')
    A('s_waitcnt vmcnt(0)')
    for k in range(5):
        A(f'v_lshlrev_b32 v{16+2*k}, 16, v{8+k}\nv_and_b32 v{17+2*k}, 0xffff0000, v{8+k}')
    for r in range(8):
        A('v_mov_b32 v26, 0')
        for k in range(5):
            x = 32+5*r+k
            A(f'''v_lshlrev_b32 v27, 16, v{x}
                  v_and_b32 v28, 0xffff0000, v{x}
                  v_mul_f32 v27, v27, v{16+2*k}
                  v_mul_f32 v28, v28, v{17+2*k}
                  v_cvt_pk_bf16_f32 v27, v27, v28
                  v_lshlrev_b32 v28, 16, v27
                  v_and_b32 v27, 0xffff0000, v27
                  v_add_f32 v26, v26, v28
                  v_add_f32 v26, v26, v27''')
        A('''v_mov_b32 v27, v26
             s_nop 1
             v_permlane32_swap_b32 v26, v27
             v_add_f32 v26, v26, v27
             v_mov_b32 v27, v26
             s_nop 1
             v_permlane16_swap_b32 v26, v27
             v_add_f32 v26, v26, v27
             s_nop 1
             v_add_f32_dpp v26, v26, v26 row_ror:8 row_mask:0xf bank_mask:0xf
             s_nop 1
             v_add_f32_dpp v26, v26, v26 row_ror:4 row_mask:0xf bank_mask:0xf
             s_nop 1
             v_add_f32_dpp v26, v26, v26 row_ror:2 row_mask:0xf bank_mask:0xf
             s_nop 1
             v_add_f32_dpp v26, v26, v26 row_ror:1 row_mask:0xf bank_mask:0xf''')
        A(f'v_mov_b32 v{80+r}, v26')
    A('v_mov_b32 v26, v80')
    for r in range(1, 8):
        A(f'v_cmp_eq_u32 vcc, {r}, v1\ns_nop 1\nv_cndmask_b32 v26, v26, v{80+r}, vcc')
    A(f'''v_cvt_pk_bf16_f32 v26, v26, v26
          v_lshlrev_b32 v26, 16, v26
          v_mul_f32 v27, 0xbfb8aa3b, v26
          v_exp_f32 v27, v27
          s_nop 0
          v_add_f32 v27, 1.0, v27
          v_rcp_f32 v27, v27
          s_nop 0
          v_cvt_pk_bf16_f32 v27, v27, v27
          v_lshlrev_b32 v28, 16, v27            ; g
          v_sub_f32 v29, 1.0, v28
          v_cvt_pk_bf16_f32 v29, v29, v29
          v_lshlrev_b32 v29, 16, v29            ; 1-g
          s_lshl_b32 s5, s4, 3
          s_add_u32 s5, s5, {GBUF}
          v_lshlrev_b32 v30, 3, v1
          v_add_u32 v30, s5, v30
          v_cmp_gt_u32 vcc, 8, v1
          s_and_saveexec_b64 s[84:85], vcc
          buffer_store_dwordx2 v[28:29], v30, s[16:19], 0 offen sc1
          s_mov_b64 exec, s[84:85]''')

def task_O(A):
    srd(A, 12, I_WO, 4096*1280)
    A('''s_mul_i32 s30, s3, 52429
         s_lshr_b32 s30, s30, 18            ; rb = s3/5
         s_mul_i32 s31, s30, 5
         s_sub_u32 s31, s3, s31             ; ct''')
    gemm_setup_common(A)
    A(f'''s_lshl_b32 s7, s30, 7
          v_add_u32 v28, s7, v20
          v_lshlrev_b32 v8, 13, v28
          v_lshl_add_u32 v8, v21, 4, v8
          v_add_u32 v8, {OX}, v8
          v_add_u32 v9, {32*8192}, v8
          v_add_u32 v10, {64*8192}, v8
          v_add_u32 v11, {96*8192}, v8
          v_mul_u32_u24 v12, 1280, v22
          v_lshl_add_u32 v12, v23, 4, v12
          s_lshl_b32 s7, s31, 8
          v_add_u32 v12, s7, v12
          v_add_u32 v13, {16*1280}, v12
          v_add_u32 v14, {32*1280}, v12
          v_add_u32 v15, {48*1280}, v12
          s_mov_b32 s34, 0
          s_mov_b32 s35, 0''')
    A.xpass = A.wpass = 0
    gemm_loop(A, 64, False, 's[16:19]', 's[12:15]', 34, 35, 128, 64*1280, 'o')
    A('s_nop 7\ns_nop 7')
    A('''v_and_b32 v24, 15, v7
         v_lshrrev_b32 v25, 4, v7
         v_lshrrev_b32 v26, 2, v24
         v_and_b32 v27, 3, v24''')
    A(f'''v_lshl_add_u32 v28, v26, 3, v27
          s_lshl_b32 s7, s30, 7
          s_lshr_b32 s36, s6, 1
          s_lshl_b32 s36, s36, 6
          s_add_u32 s7, s7, s36
          v_add_u32 v28, s7, v28
          v_lshlrev_b32 v30, 3, v28
          v_add_u32 v30, {GBUF}, v30          ; g addr
          v_mul_u32_u24 v29, 1280, v28
          v_lshl_add_u32 v29, v25, 4, v29
          s_lshl_b32 s7, s31, 8
          s_and_b32 s36, s6, 1
          s_lshl_b32 s36, s36, 7
          s_add_u32 s7, s7, s36
          v_add_u32 v29, s7, v29
          s_mov_b32 s36, {ABUF}''')
    for mt in range(4):
        ro = 32*(mt>>1) + 4*(mt&1)
        A(f'buffer_load_dwordx2 v[{128+2*mt}:{129+2*mt}], v30, s[16:19], 0 offen offset:{ro*8} sc1')
        A(f'v_add_u32 v{136+mt}, {ro*1280}, v29')
        for pp in range(2):
            b = 144 + 8*mt + 4*pp
            A(f'buffer_load_dwordx4 v[{b}:{b+3}], v{136+mt}, s[16:19], s36 offen offset:{pp*64} sc1')
    A('s_waitcnt vmcnt(0)')
    for mt in range(4):
        for pp in range(2):
            b = 144 + 8*mt + 4*pp
            for j in range(4):
                a = 64 + 4*((2*pp + (j>>1))*4 + mt) + 2*(j&1)
                A(f'''v_cvt_pk_bf16_f32 v16, v{a}, v{a+1}          ; b rounded
                      v_lshlrev_b32 v17, 16, v16
                      v_and_b32 v18, 0xffff0000, v16
                      v_mul_f32 v17, v17, v{129+2*mt}
                      v_mul_f32 v18, v18, v{129+2*mt}
                      v_cvt_pk_bf16_f32 v16, v17, v18               ; (1-g)*b
                      v_lshlrev_b32 v17, 16, v{b+j}
                      v_and_b32 v18, 0xffff0000, v{b+j}
                      v_mul_f32 v17, v17, v{128+2*mt}
                      v_mul_f32 v18, v18, v{128+2*mt}
                      v_cvt_pk_bf16_f32 v19, v17, v18               ; g*a
                      v_lshlrev_b32 v17, 16, v16
                      v_and_b32 v18, 0xffff0000, v16
                      v_lshlrev_b32 v20, 16, v19
                      v_and_b32 v21, 0xffff0000, v19
                      v_add_f32 v17, v17, v20
                      v_add_f32 v18, v18, v21
                      v_cvt_pk_bf16_f32 v{32+j}, v17, v18''')
            A(f'buffer_store_dwordx4 v[32:35], v{136+mt}, s[20:23], 0 offen offset:{pp*64}\ns_nop 1')

if __name__ == '__main__':
    from chain import *
    build([('init_kernel', 64, 0, task_init, (256, 256)),
           ('gate_kernel', 64, 0, task_G, (256, 256)),
           ('proj_kernel', 1536, P_LDS, task_P, (256, 256)),
           ('chain_kernel', 64, C_LDS, task_chain, (512, 256)),
           ('attn_kernel', 512, 0, task_T, (256, 256)),
           ('oproj_kernel', 80, P_LDS, task_O, (256, 256))], 't3.s')
```

```python
import sys
import chain
from gen import *
from chain import CKV, CQ, CF1, CF2, CF3, CG_, CCH, CT, cnt_addr, C_LDS
from post import task_T, task_G
from fft import task_F1, task_F2, task_F3
from o2 import task_O2
chain.FUSED = True
QSLOT = 152000
NWG = 256
R_KV, R_G, R_Q, R_F1, R_F2, R_F3, R_TO = 0, 1024, 1088, 1600, 1792, 2113, 2273
KSPL = 56
R_TB = R_TO + KSPL*18
NT = R_TB + (65-KSPL)*48

def wait_cnt(A, Ldead, addr_code, tgt, srdn='s[16:19]', slp=24):
    Lw = A.newlabel('ww'); Lok = A.newlabel('wok')
    A(addr_code)
    A('v_mov_b32 v250, s100\ns_mov_b32 s101, 0')
    A.label(Lw)
    A(f'''buffer_load_dword v251, v250, {srdn}, 0 offen sc1
          s_waitcnt vmcnt(0)
          v_readfirstlane_b32 s100, v251
          s_cmp_ge_u32 s100, {tgt}
          s_cbranch_scc1 {Lok}
          s_add_u32 s101, s101, 1
          s_cmp_gt_u32 s101, 200000
          s_cbranch_scc1 {Ldead}
          s_sleep {slp}
          s_branch {Lw}''')
    A.label(Lok)

def wait_progress(A, Ldead):
    Lw = A.newlabel('wp'); Lok = A.newlabel('wpok'); Ls = A.newlabel('wps')
    A(f'v_mov_b32 v250, {cnt_addr(chain.CPROG)}\ns_mov_b32 s101, 0')
    A.label(Lw)
    A(f'''buffer_load_dword v251, v250, s[16:19], 0 offen sc1
          s_waitcnt vmcnt(0)
          v_readfirstlane_b32 s100, v251
          s_add_u32 s100, s100, 1
          s_cmp_ge_u32 s100, s95
          s_cbranch_scc1 {Lok}
          s_add_u32 s101, s101, 1
          s_cmp_gt_u32 s101, 100000
          s_cbranch_scc1 {Ldead}
          s_sub_u32 s100, s95, s100''')
    A.label(Ls)
    A(f'''s_sleep 110
          s_sub_u32 s100, s100, 1
          s_cmp_lg_u32 s100, 0
          s_cbranch_scc1 {Ls}
          s_branch {Lw}''')
    A.label(Lok)

def wait_flags(A, Ldead):
    Lw = A.newlabel('wf'); Lok = A.newlabel('wfok')
    A(f'''v_and_b32 v250, 31, v0
          v_lshlrev_b32 v250, 2, v250
          s_lshl_b32 s100, s5, 7
          s_add_u32 s100, s100, {cnt_addr(CCH)}
          v_add_u32 v250, s100, v250
          s_mov_b32 s101, 0''')
    A.label(Lw)
    A(f'''buffer_load_dword v251, v250, s[16:19], 0 offen sc1
          s_waitcnt vmcnt(0)
          v_cmp_ge_u32 vcc, s95, v251
          s_cbranch_vccz {Lok}
          s_add_u32 s101, s101, 1
          s_cmp_gt_u32 s101, 200000
          s_cbranch_scc1 {Ldead}
          s_sleep 12
          s_branch {Lw}''')
    A.label(Lok)

def waits(A, Ldead, fns):
    Lsk = A.newlabel('wsk')
    A(f's_cmp_lg_u32 s39, 0\ns_cbranch_scc1 {Lsk}')
    for f in fns: f()
    A.label(Lsk)
    A('s_barrier')

def fused_body(A):
    Lwork = A.newlabel('work'); Lexit = A.newlabel('fexit')
    srd(A, 96, I_DBG, 256)
    A(f's_cmp_ge_u32 s2, 64\ns_cbranch_scc1 {Lwork}')
    chain.task_chain(A)
    A(f's_branch {Lexit}')
    A.label(Lwork)
    A('v_lshrrev_b32 v250, 6, v0\ns_nop 0\nv_readfirstlane_b32 s39, v250')
    waits(A, Lexit, [lambda: wait_cnt(A, Lexit, 's_mov_b32 s100, 128', 64, 's[96:99]', 4)])
    A('s_mov_b32 s94, 4000')
    A('s_mov_b32 s93, -1')
    Lloop = A.newlabel('wloop'); A.label(Lloop)
    Lns = A.newlabel('nosig'); Lskip = A.newlabel('skipf')
    if chain.TRACE:
        A(f'''s_waitcnt vmcnt(0)
              s_memrealtime s[100:101]
              s_waitcnt lgkmcnt(0)
              v_mov_b32 v250, s100
              s_lshl_b32 s101, s94, 2
              s_add_u32 s101, s101, {chain.TRC + 65536 + 16384}
              v_mov_b32 v251, s101
              buffer_store_dword v250, v251, s[16:19], 0 offen''')
    A(f'''s_waitcnt vmcnt(0) lgkmcnt(0)
          s_barrier
          v_cmp_eq_u32 vcc, 0, v0
          s_and_saveexec_b64 s[84:85], vcc
          s_cbranch_execz {Lskip}
          v_mov_b32 v250, 1
          s_cmp_eq_u32 s93, -1
          s_cbranch_scc1 {Lns}
          v_mov_b32 v251, s93
          buffer_atomic_add v250, v251, s[16:19], 0 offen''')
    A.label(Lns)
    A(f'''v_mov_b32 v251, 0
          buffer_atomic_add v250, v251, s[96:99], 0 offen sc0
          s_waitcnt vmcnt(0)
          v_mov_b32 v251, {QSLOT}
          ds_write_b32 v251, v250''')
    A.label(Lskip)
    A(f'''s_mov_b64 exec, s[84:85]
          s_waitcnt lgkmcnt(0)
          s_barrier
          v_mov_b32 v251, {QSLOT}
          ds_read_b32 v250, v251
          s_waitcnt lgkmcnt(0)
          v_readfirstlane_b32 s94, v250
          s_mov_b32 s93, -1
          s_cmp_ge_u32 s94, {NT}
          s_cbranch_scc1 {Lexit}''')
    if chain.TRACE:
        A(f'''s_memrealtime s[100:101]
              s_waitcnt lgkmcnt(0)
              v_mov_b32 v250, s100
              s_lshl_b32 s101, s94, 2
              s_add_u32 s101, s101, {chain.TRC + 65536}
              v_mov_b32 v251, s101
              buffer_store_dword v250, v251, s[16:19], 0 offen''')
    labs = {k: A.newlabel('t'+k) for k in ('P','G','F1','F2','F3','T','O')}
    LQ = A.newlabel('tQ'); LTO = A.newlabel('tTO')
    A(f'''s_cmp_lt_u32 s94, {R_G}
          s_cbranch_scc0 {labs['G']}
          s_mov_b32 s3, s94
          s_lshr_b32 s93, s3, 6
          s_lshl_b32 s93, s93, 6
          s_add_u32 s93, s93, {cnt_addr(CKV)}
          s_branch {labs['P']}''')
    A.label(labs['G'])
    A(f'''s_cmp_lt_u32 s94, {R_Q}
          s_cbranch_scc0 {LQ}
          s_sub_u32 s3, s94, {R_G}
          s_mov_b32 s93, {cnt_addr(CG_)}''')
    task_G(A); A(f's_branch {Lloop}')
    A.label(LQ)
    A(f'''s_cmp_lt_u32 s94, {R_F1}
          s_cbranch_scc0 {labs['F1']}
          s_sub_u32 s3, s94, {R_Q}
          s_lshr_b32 s93, s3, 5
          s_lshl_b32 s93, s93, 6
          s_add_u32 s93, s93, {cnt_addr(CQ)}
          s_add_u32 s3, s3, 1024''')
    A.label(labs['P'])
    task_P(A); A(f's_branch {Lloop}')
    A.label(labs['F1'])
    A(f'''s_cmp_lt_u32 s94, {R_F2}
          s_cbranch_scc0 {labs['F2']}
          s_sub_u32 s3, s94, {R_F1}
          s_mov_b32 s93, {cnt_addr(CF1)}''')
    task_F1(A); A(f's_branch {Lloop}')
    A.label(labs['F2'])
    A(f'''s_cmp_lt_u32 s94, {R_F3}
          s_cbranch_scc0 {labs['F3']}
          s_sub_u32 s3, s94, {R_F2}
          s_mov_b32 s93, {cnt_addr(CF2)}''')
    waits(A, Lexit, [lambda: wait_cnt(A, Lexit, f's_mov_b32 s100, {cnt_addr(CF1)}', 192, slp=40)])
    task_F2(A); A(f's_branch {Lloop}')
    A.label(labs['F3'])
    A(f'''s_cmp_lt_u32 s94, {R_TO}
          s_cbranch_scc0 {LTO}
          s_sub_u32 s3, s94, {R_F3}
          s_mul_i32 s93, s3, 52429
          s_lshr_b32 s93, s93, 18
          s_lshl_b32 s93, s93, 6
          s_add_u32 s93, s93, {cnt_addr(CF3)}''')
    waits(A, Lexit, [lambda: wait_cnt(A, Lexit, f's_mov_b32 s100, {cnt_addr(CF2)}', 321, slp=40)])
    task_F3(A); A(f's_branch {Lloop}')
    A.label(LTO)
    LTB = A.newlabel('tTB'); LTC = A.newlabel('tTC')
    A(f'''s_cmp_lt_u32 s94, {R_TB}
          s_cbranch_scc0 {LTB}
          s_sub_u32 s95, s94, {R_TO}
          s_mul_i32 s4, s95, 3641            ; /18
          s_lshr_b32 s4, s4, 16              ; k
          s_mul_i32 s5, s4, 18
          s_sub_u32 s5, s95, s5              ; j
          s_branch {LTC}''')
    A.label(LTB)
    A(f'''s_sub_u32 s95, s94, {R_TB}
          s_mul_i32 s4, s95, 1366            ; /48
          s_lshr_b32 s4, s4, 16
          s_mul_i32 s5, s4, 48
          s_sub_u32 s5, s95, s5
          s_add_u32 s4, s4, {KSPL}''')
    A.label(LTC)
    A(f'''
          s_cmp_lt_u32 s5, 8
          s_cbranch_scc0 {labs['O']}
          s_cmp_ge_u32 s4, 64
          s_cbranch_scc1 {Lloop}
          s_lshl_b32 s3, s4, 3
          s_add_u32 s3, s3, s5
          s_lshl_b32 s93, s4, 6
          s_add_u32 s93, s93, {cnt_addr(CT)}
          s_mov_b32 s95, s4''')
    waits(A, Lexit, [lambda: wait_progress(A, Lexit),
      lambda: wait_cnt(A, Lexit, f's_lshr_b32 s100, s95, 2\ns_lshl_b32 s100, s100, 6\ns_add_u32 s100, s100, {cnt_addr(CKV)}', 64),
      lambda: wait_cnt(A, Lexit, f's_lshr_b32 s100, s95, 2\ns_lshl_b32 s100, s100, 6\ns_add_u32 s100, s100, {cnt_addr(CQ)}', 32)])
    A('s_mov_b32 s38, s5')
    def tmid():
        A('s_mov_b32 s37, s5\ns_mov_b32 s5, s38')
        waits(A, Lexit, [lambda: wait_flags(A, Lexit)])
        A('s_mov_b32 s5, s37')
    task_T(A, tmid); A(f's_branch {Lloop}')
    A.label(labs['O'])
    A(f'''s_cmp_eq_u32 s4, 0
          s_cbranch_scc1 {Lloop}
          s_sub_u32 s95, s4, 1               ; seg
          s_cmp_ge_u32 s4, {KSPL}
          s_cselect_b32 s3, 40, 10
          s_mul_i32 s3, s95, s3
          s_add_u32 s3, s3, s5
          s_sub_u32 s3, s3, 8''')
    ctw = lambda: wait_cnt(A, Lexit, f's_lshl_b32 s100, s95, 6\ns_add_u32 s100, s100, {cnt_addr(CT)}', 8, slp=8)
    waits(A, Lexit, [lambda: wait_progress(A, Lexit),
      lambda: wait_cnt(A, Lexit, f's_lshr_b32 s100, s95, 1\ns_lshl_b32 s100, s100, 6\ns_add_u32 s100, s100, {cnt_addr(CF3)}', 5),
      lambda: wait_cnt(A, Lexit, f's_mov_b32 s100, {cnt_addr(CG_)}', 64)])
    LOS = A.newlabel('tOS')
    A(f's_cmp_ge_u32 s95, {KSPL-1}\ns_cbranch_scc1 {LOS}')
    waits(A, Lexit, [ctw])
    task_O2(A); A(f's_branch {Lloop}')
    A.label(LOS)
    def omid():
        A('s_mov_b32 s37, s39\ns_mov_b32 s39, s6')
        waits(A, Lexit, [ctw])
        A('s_mov_b32 s39, s37')
    task_O2(A, True, omid)
    A('v_lshrrev_b32 v250, 6, v0\ns_nop 0\nv_readfirstlane_b32 s39, v250')
    A(f's_branch {Lloop}')
    A.label(Lexit)

if __name__ == '__main__':
    d = [int(x) for x in sys.argv[2:5]] if len(sys.argv) > 4 else (12, 12, 36)
    chain.D1, chain.D2, chain.D3 = d
    chain.TRACE = len(sys.argv) > 5 and sys.argv[5] == 't'
    assert all((k*3641)>>16 == k//18 for k in range(65*18)) and all((k*1366)>>16 == k//48 for k in range(9*48))
    build([('fused_kernel', NWG, C_LDS, fused_body, (512, 256))], sys.argv[1])
```

```python
from asmlib import *
from layout import *
from gen import *
from post import softmax12, round_scale12

MSTR   = 1344
C_MEM  = 0
C_SC   = 12160
C_VM   = C_SC + 12288
C_RD   = C_VM + 2048
C_WO   = C_RD + 2048
C_STG  = C_WO + 81920
SSTR   = 656
C_LDS  = C_STG + 2*32*SSTR

def wreg(f):
    return ('a', 4*f) if f < 64 else ('v', 192 + 4*(f-64))
def worg(T, kk):
    return 112 + 4*(2*T+kk)
D1, D2, D3 = 0, 0, 0
ADAPT = None
def dsleep(A, sreg):
    L = A.newlabel('dsl'); A(f's_mov_b32 s7, s{sreg}'); A.label(L); A(f's_sleep 1\ns_sub_u32 s7, s7, 1\ns_cmp_gt_i32 s7, 0\ns_cbranch_scc1 {L}')
def dadapt(A, sreg):
    dec, inc = ADAPT
    A(f'''s_cmp_eq_u32 s90, 1
          s_cselect_b32 s7, {-dec & 0xffffffff}, {inc}
          s_add_i32 s{sreg}, s{sreg}, s7
          s_max_i32 s{sreg}, s{sreg}, 1''')
def wr4(f):
    t, b = wreg(f); return f'{t}[{b}:{b+3}]'
def wr2(f, hf):
    t, b = wreg(f); return f'{t}[{b+2*hf}:{b+2*hf+1}]'

PROF = False
def stamp(A, i):
    if TRACE:
        A(f'''s_memrealtime s[100:101]
              s_waitcnt lgkmcnt(0)
              v_mov_b32 v102, s100
              s_lshl_b32 s7, s3, 2
              s_add_u32 s7, s7, s6
              s_lshl_b32 s7, s7, 6
              s_add_u32 s7, s7, s79
              s_lshl_b32 s7, s7, 5
              s_add_u32 s7, s7, {TRC + (1<<20) + 4*i}
              v_mov_b32 v103, s7
              buffer_store_dword v102, v103, s[16:19], 0 offen''')
        return
    if not PROF: return
    A(f'''s_memtime s[98:99]
          s_waitcnt lgkmcnt(0)
          s_sub_u32 s100, s98, s91
          s_mov_b32 s91, s98
          s_add_u32 s{92+i}, s{92+i}, s100''')

FUSED = False
TRACE = False
TRC = 110*MB
CKV, CQ, CF1, CF2, CF3, CG_, CCH, CT, CPROG = 0, 16, 32, 33, 34, 66, 67, 131, 200
def cnt_addr(i): return FLAGS + 64*i

def task_chain(A, standalone=True):
    if FUSED:
        A(f'''v_lshlrev_b32 v1, 4, v0
              v_mov_b32 v4, 0
              v_mov_b32 v5, 0
              v_mov_b32 v6, 0
              v_mov_b32 v7, 0
              v_mov_b32 v8, -1
              v_mov_b32 v9, -1
              v_mov_b32 v10, -1
              v_mov_b32 v11, -1
              s_mul_i32 s4, s3, 20480
              s_add_u32 s4, s4, {PART}''')
        for p in range(5):
            A(f'buffer_store_dwordx4 v[4:7], v1, s[16:19], s4 offen sc1\ns_add_u32 s4, s4, 4096')
        A(f'''s_mul_i32 s4, s3, 20480
              s_add_u32 s4, s4, {MEMB}''')
        for p in range(5):
            A(f'buffer_store_dwordx4 v[8:11], v1, s[16:19], s4 offen sc1\ns_add_u32 s4, s4, 4096')
        A(f'''
              s_lshl_b32 s4, s3, 12
              s_add_u32 s4, s4, {FLAGS}
              s_cmp_lt_u32 s3, 5
              s_cselect_b32 s4, s4, 0x7ff00000
              buffer_store_dwordx4 v[4:7], v1, s[16:19], s4 offen sc1
              s_waitcnt vmcnt(0)
              s_barrier
              v_mov_b32 v4, 1
              v_mov_b32 v5, 128
              v_cmp_eq_u32 vcc, 0, v0
              s_and_saveexec_b64 s[84:85], vcc
              buffer_atomic_add v4, v5, s[96:99], 0 offen
              s_mov_b64 exec, s[84:85]''')
    srd(A, 12, I_WQ, 640*8192); srd(A, 24, I_WK, 640*8192); srd(A, 28, I_WV, 640*8192); srd(A, 68, I_WO, 4096*1280); srd(A, 72, I_MEM0, 10240)
    A('''s_lshr_b32 s4, s3, 1          ; head
         s_and_b32 s5, s3, 1           ; half j
         v_and_b32 v1, 63, v0
         v_lshrrev_b32 v2, 6, v0
         s_nop 0
         v_readfirstlane_b32 s6, v2    ; wave
         v_and_b32 v3, 15, v1          ; rho / i
         v_lshrrev_b32 v4, 4, v1       ; g
         v_lshrrev_b32 v5, 2, v3       ; rho>>2
         v_and_b32 v6, 3, v3           ; rho&3''')
    A(f'''v_lshrrev_b32 v8, 4, v0
          v_and_b32 v9, 15, v0
          v_lshlrev_b32 v10, 13, v8
          v_lshl_add_u32 v10, v9, 4, v10
          s_lshl_b32 s7, s4, 8
          v_add_u32 v10, s7, v10          ; q/k rows 0..15
          v_add_u32 v11, {16*8192}, v10   ; rows 16..31
          v_mul_u32_u24 v12, {SSTR}, v8
          v_lshl_add_u32 v12, v9, 4, v12
          v_add_u32 v12, {C_STG}, v12
          v_lshrrev_b32 v8, 3, v0
          v_and_b32 v9, 7, v0
          v_lshlrev_b32 v13, 13, v8
          v_lshl_add_u32 v13, v9, 4, v13
          s_lshl_b32 s37, s5, 7
          s_add_u32 s7, s7, s37
          v_add_u32 v13, s7, v13          ; v global
          v_mul_u32_u24 v14, {SSTR}, v8
          v_lshl_add_u32 v14, v9, 4, v14
          v_add_u32 v14, {C_STG+512}, v14''')
    A(f'''v_lshl_add_u32 v8, v4, 3, v5
          v_mul_u32_u24 v15, {SSTR}, v8
          v_lshl_add_u32 v15, v6, 4, v15       ; + 8c*2
          v_add_u32 v15, {C_STG}, v15
          s_lshl_b32 s7, s6, 6                 ; 32w*2
          v_add_u32 v16, s7, v15               ; q/k base
          s_lshr_b32 s7, s6, 1
          s_lshl_b32 s7, s7, 6                 ; 32(w>>1)*2
          s_and_b32 s37, s6, 1
          s_lshl_b32 s37, s37, 3               ; 4(w&1)*2
          s_add_u32 s7, s7, s37
          s_add_u32 s7, s7, 512
          v_add_u32 v17, s7, v15               ; v base''')
    def wl_issue(kk):
        b = 44 + 20*(kk%3)
        A(f's_mov_b32 s38, {kk*32*8192}')
        A(f'''buffer_load_dwordx4 v[{b}:{b+3}], v10, s[12:15], s38 offen
              buffer_load_dwordx4 v[{b+4}:{b+7}], v11, s[12:15], s38 offen
              buffer_load_dwordx4 v[{b+8}:{b+11}], v10, s[24:27], s38 offen
              buffer_load_dwordx4 v[{b+12}:{b+15}], v11, s[24:27], s38 offen
              buffer_load_dwordx4 v[{b+16}:{b+19}], v13, s[28:31], s38 offen''')
    def wl_write(kk):
        o = (kk&1)*32*SSTR; b = 44 + 20*(kk%3)
        A(f'''ds_write_b128 v12, v[{b}:{b+3}] offset:{o}
              ds_write_b128 v12, v[{b+4}:{b+7}] offset:{o+16*SSTR}
              ds_write_b128 v12, v[{b+8}:{b+11}] offset:{o+256}
              ds_write_b128 v12, v[{b+12}:{b+15}] offset:{o+16*SSTR+256}
              ds_write_b128 v14, v[{b+16}:{b+19}] offset:{o}''')
    def wl_read(kk, buf):
        o = buf*32*SSTR
        for tile in range(4):
            for hf in range(2):
                off = o + 4*hf*SSTR + (tile>>1)*256 + (tile&1)*8
                A(f'ds_read_b64_tr_b16 {wr2(tile*20+kk, hf)}, v16 offset:{off}')
        for hf in range(2):
            A(f'ds_read_b64_tr_b16 v[{40+2*hf}:{41+2*hf}], v17 offset:{o+4*hf*SSTR}')
        A(f's_waitcnt lgkmcnt(0)\nds_write_b128 v18, v[40:43] offset:{kk*1024}')
    A(f'''s_mul_i32 s7, s6, 20480
          s_add_u32 s7, s7, {C_WO}
          v_lshlrev_b32 v18, 4, v1
          v_add_u32 v18, s7, v18''')
    wl_issue(0); wl_issue(1); wl_issue(2)
    for kk in range(20):
        A(f's_waitcnt vmcnt({5*min(2, 19-kk)})')
        wl_write(kk)
        A('s_waitcnt lgkmcnt(0)')
        if kk < 17: wl_issue(kk+3)
        A('s_barrier')
        wl_read(kk, kk&1)
    A('s_waitcnt lgkmcnt(0)\ns_barrier')
    WSTR = 1296
    A(f'''s_lshl_b32 s7, s4, 7
          s_lshl_b32 s37, s5, 6
          s_add_u32 s7, s7, s37               ; h*128 + 64j
          s_lshl_b32 s37, s6, 3
          s_add_u32 s7, s7, s37               ; + 8w
          s_mul_i32 s7, s7, 1280
          v_lshlrev_b32 v10, 4, v1
          v_add_u32 v10, s7, v10              ; global x4
          v_lshlrev_b32 v11, 2, v1
          v_add_u32 v11, s7, v11
          v_add_u32 v11, 1024, v11            ; global x1
          s_mul_i32 s7, s37, {WSTR}
          s_add_u32 s7, s7, {C_STG}
          v_lshlrev_b32 v12, 4, v1
          v_add_u32 v12, s7, v12              ; lds x4
          v_lshlrev_b32 v13, 2, v1
          v_add_u32 v13, s7, v13
          v_add_u32 v13, 1024, v13            ; lds x1
          v_lshl_add_u32 v8, v4, 3, v5
          v_mul_u32_u24 v15, {WSTR}, v8
          v_lshl_add_u32 v15, v6, 3, v15      ; + 4c*2
          s_mul_i32 s7, s6, 320
          s_add_u32 s7, s7, {C_STG}
          v_add_u32 v15, s7, v15
          s_mul_i32 s7, s6, 20480
          s_add_u32 s7, s7, {C_WO}
          v_lshlrev_b32 v16, 4, v1
          v_add_u32 v16, s7, v16''')
    for kk in range(2):
        if kk == 0:
            for k2 in range(2):
                for rr in range(8):
                    A(f's_mov_b32 s38, {(k2*32+rr)*1280}')
                    A(f'buffer_load_dwordx4 v[{20+40*k2+4*rr}:{23+40*k2+4*rr}], v10, s[68:71], s38 offen')
                    A(f'buffer_load_dword v{52+40*k2+rr}, v11, s[68:71], s38 offen')
        A(f's_waitcnt vmcnt({16 if kk == 0 else 0})')
        for rr in range(8):
            A(f'ds_write_b128 v12, v[{20+40*kk+4*rr}:{23+40*kk+4*rr}] offset:{rr*WSTR}')
            A(f'ds_write_b32 v13, v{52+40*kk+rr} offset:{rr*WSTR}')
        A('s_waitcnt lgkmcnt(0)\ns_barrier')
        for T in range(10):
            for hf in range(2):
                A(f'ds_read_b64_tr_b16 v[{worg(T,kk)+2*hf}:{worg(T,kk)+2*hf+1}], v15 offset:{4*hf*WSTR + T*32}')
        A('s_waitcnt lgkmcnt(0)\ns_barrier')
    A('v_mov_b32 v2, v16')
    A(f'''v_min_u32 v7, 8, v3
          v_mul_u32_u24 v7, {MSTR}, v7
          v_lshl_add_u32 v7, v4, 4, v7
          v_add_u32 v7, {C_MEM}, v7''')
    A(f'''v_lshl_add_u32 v8, v5, 3, v6
          v_lshlrev_b32 v8, 13, v8
          v_lshl_add_u32 v8, v4, 4, v8
          s_lshl_b32 s7, s4, 8
          s_lshl_b32 s37, s6, 6
          s_add_u32 s7, s7, s37
          s_add_u32 s7, s7, {KX}
          v_add_u32 v8, s7, v8''')
    A(f'''v_lshl_add_u32 v9, v5, 3, v6
          v_lshlrev_b32 v9, 6, v9
          v_lshl_add_u32 v9, v4, 4, v9
          s_lshl_b32 s7, s4, 13
          s_lshl_b32 s37, s5, 12
          s_add_u32 s7, s7, s37
          s_add_u32 s7, s7, {VXT}
          v_add_u32 v9, s7, v9''')
    A(f'''v_and_b32 v20, 7, v3
          v_lshl_add_u32 v10, v4, 3, v20
          v_lshlrev_b32 v10, 4, v10
          v_lshrrev_b32 v20, 3, v3
          v_lshl_add_u32 v10, v20, 9, v10
          s_mul_i32 s7, s3, 20480
          s_mul_i32 s37, s6, 5120
          s_add_u32 s7, s7, s37
          s_add_u32 s7, s7, {PART}
          v_add_u32 v10, s7, v10''')
    A(f'''v_lshrrev_b32 v11, 3, v1
          v_mul_u32_u24 v11, 20480, v11
          v_and_b32 v20, 7, v1
          v_lshl_add_u32 v11, v20, 4, v11
          s_lshl_b32 s7, s6, 7
          s_lshl_b32 s37, s3, 9
          s_add_u32 s7, s7, s37
          s_add_u32 s7, s7, {PART}
          v_add_u32 v11, s7, v11''')
    A(f'''v_lshlrev_b32 v12, 3, v1
          s_lshl_b32 s7, s3, 9
          s_lshl_b32 s37, s6, 7
          s_add_u32 s7, s7, s37
          s_add_u32 s7, s7, {MEMB}
          v_add_u32 v12, s7, v12
          v_cmp_lt_u32 vcc, 7, v1
          v_mov_b32 v20, 0x7ff00000
          s_nop 1
          v_cndmask_b32 v12, v12, v20, vcc''')
    A(f'''v_lshrrev_b32 v13, 3, v0
          v_lshlrev_b32 v13, 7, v13
          v_and_b32 v20, 7, v0
          v_lshl_add_u32 v13, v20, 3, v13
          v_add_u32 v13, {MEMB}, v13''')
    for k in range(5):
        A(f'''v_add_u32 v20, {k*256}, v0
              v_mul_u32_u24 v21, 52429, v20
              v_lshrrev_b32 v21, 23, v21          ; i = idx/160
              v_mul_u32_u24 v22, 160, v21
              v_sub_u32 v22, v20, v22
              v_mul_u32_u24 v21, {MSTR}, v21
              v_lshl_add_u32 v21, v22, 3, v21
              v_add_u32 v{96+k}, {C_MEM}, v21
              v_and_b32 v21, 7, v20
              v_lshrrev_b32 v22, 3, v20
              v_mul_u32_u24 v21, {MSTR}, v21
              v_lshl_add_u32 v21, v22, 3, v21
              v_add_u32 v{104+k}, {C_MEM}, v21''')
    A(f'''v_lshlrev_b32 v14, 8, v3
          v_lshl_add_u32 v14, v4, 4, v14
          s_lshl_b32 s7, s4, 11
          s_lshl_b32 s37, s6, 6
          s_add_u32 s7, s7, s37
          s_add_u32 s7, s7, {KM}
          s_cmp_eq_u32 s5, 0
          s_cselect_b32 s7, s7, 0x7ff00000
          v_add_u32 v14, s7, v14
          v_cmp_lt_u32 vcc, 7, v3
          v_mov_b32 v20, 0x7ff00000
          s_nop 1
          v_cndmask_b32 v14, v14, v20, vcc''')
    A(f'''v_lshl_add_u32 v15, v5, 3, v6
          v_lshlrev_b32 v15, 4, v15
          v_lshl_add_u32 v15, v4, 3, v15
          s_lshl_b32 s7, s4, 11
          s_lshl_b32 s37, s5, 10
          s_add_u32 s7, s7, s37
          s_lshr_b32 s37, s6, 1
          s_lshl_b32 s37, s37, 9
          s_add_u32 s7, s7, s37
          s_and_b32 s37, s6, 1
          s_lshl_b32 s37, s37, 6
          s_add_u32 s7, s7, s37
          s_add_u32 s7, s7, {VMT}
          v_add_u32 v15, s7, v15
          v_cmp_lt_u32 vcc, 1, v4
          v_mov_b32 v20, 0x7ff00000
          s_nop 1
          v_cndmask_b32 v15, v15, v20, vcc''')
    A(f'''v_lshlrev_b32 v110, 4, v1
          s_mul_i32 s7, s6, 3072
          s_add_u32 s7, s7, {C_SC}
          v_add_u32 v109, s7, v110
          v_mov_b32 v111, 1
          s_mov_b32 s76, 0
          s_mov_b32 s77, 0x00ff00ff
          s_mov_b32 s94, 0xff00ff00
          s_mov_b32 s95, 0xff00ff00
          v_subrev_u32 v5, 128, v110
          v_add_u32 v5, 2048, v5
          v_mov_b32 v6, v5
          v_cmp_gt_u32 vcc, 8, v3
          v_add_u32 v20, 1024, v110
          s_nop 0
          v_cndmask_b32 v5, v5, v110, vcc
          v_cndmask_b32 v6, v6, v20, vcc
          s_mov_b32 s78, 0xfffffffe
          s_mov_b32 s79, 0              ; step
          s_mov_b32 s80, 0              ; seg*32*8192
          s_mov_b32 s81, {4*8192}       ; seg*32*8192 + 4*8192
          s_mov_b32 s82, 0              ; seg*65536
          s_mov_b32 s83, 0              ; step*10240
          s_mov_b32 s87, 4096
          s_mov_b32 s88, 8192
          s_mov_b32 s86, 4096
          s_mov_b32 s89, 8192''')
    if ADAPT:
        A(f'''s_mov_b32 s93, {2*D1}
              s_cmp_lt_u32 s3, 40
              s_cselect_b32 s94, {2*D2}, {2*D3}''')
    A(f'''v_mov_b32 v20, 0
          v_mov_b32 v21, 0
          v_lshlrev_b32 v22, 3, v0
          v_add_u32 v22, {C_MEM + 8*MSTR}, v22
          v_cmp_gt_u32 vcc, 160, v0
          s_and_saveexec_b64 s[84:85], vcc
          ds_write_b64 v22, v[20:21]
          s_mov_b64 exec, s[84:85]
          v_lshlrev_b32 v22, 3, v0''')
    for k in range(5):
        A(f'buffer_load_dwordx2 v[{24+2*k}:{25+2*k}], v22, s[72:75], {["0","0","s86","s86","s89"][k]} offen offset:{(k&1)*2048}')
    def kv_prefetch():
        A(f'''buffer_load_dwordx4 v[56:59], v8, s[16:19], s80 offen sc1
              buffer_load_dwordx4 v[60:63], v8, s[16:19], s81 offen sc1''')
        for pt in range(4):
            A(f'buffer_load_dwordx4 v[{64+4*pt}:{67+4*pt}], v9, s[16:19], s80 offen offset:{(32*(pt>>1)+4*(pt&1))*64} sc1')
    Lend = A.newlabel('cend')
    if FUSED:
        A('s_waitcnt vmcnt(0)')
        for (srdn, off, tgt) in (('s[96:99]', 128, 64), ('s[16:19]', cnt_addr(CKV), 64)):
            Lw = A.newlabel('cw')
            A(f'v_mov_b32 v40, {off}\ns_mov_b32 s90, 0')
            A.label(Lw)
            A(f'''s_add_u32 s90, s90, 1
                  s_cmp_gt_u32 s90, 400000
                  s_cbranch_scc1 {Lend}
                  buffer_load_dword v41, v40, {srdn}, 0 offen sc1
                  s_waitcnt vmcnt(0)
                  v_readfirstlane_b32 s7, v41
                  s_cmp_ge_u32 s7, {tgt}
                  s_cbranch_scc0 {Lw}''')
    kv_prefetch()
    A('s_waitcnt vmcnt(6)')
    for k in range(5):
        A(f'ds_write_b64 v{96+k}, v[{24+2*k}:{25+2*k}]')
    Ltop = A.newlabel('ctop'); Lnored = A.newlabel('cnored'); Lfin = A.newlabel('cfin')
    if PROF:
        for i in range(6): A(f's_mov_b32 s{92+i}, 0')
        A('s_memtime s[98:99]\ns_waitcnt lgkmcnt(0)\ns_mov_b32 s91, s98')
    A.label(Ltop)
    A('s_waitcnt lgkmcnt(0)\ns_barrier')
    for kk in range(2):
        A(f'ds_read_b128 v[{36+4*kk}:{39+4*kk}], v7 offset:{kk*64}\nds_read_b128 v[{80+4*kk}:{83+4*kk}], v2 offset:{kk*1024}')
    def cch_signal(add):
        A(f'''s_lshl_b32 s7, s3, 4
              s_lshl_b32 s100, s6, 2
              s_add_u32 s7, s7, s100
              s_add_u32 s7, s7, {cnt_addr(CCH)}
              s_add_u32 s100, s79, {add}
              v_mov_b32 v54, s100
              v_mov_b32 v55, s7
              v_cmp_eq_u32 vcc, 0, v1
              s_and_saveexec_b64 s[84:85], vcc
              buffer_store_dword v54, v55, s[16:19], 0 offen sc1
              s_mov_b64 exec, s[84:85]''')
    if FUSED:
        A(f'''s_add_u32 s7, s79, 1
              s_lshr_b32 s7, s7, 2
              s_lshl_b32 s7, s7, 6
              s_add_u32 s91, s7, {cnt_addr(CKV)}
              v_mov_b32 v52, s91
              buffer_load_dword v53, v52, s[16:19], 0 offen sc1''')
        cch_signal(0)
        A(f'''s_or_b32 s7, s3, s6
              s_cmp_eq_u32 s7, 0
              s_mov_b32 s100, 0x7ff00000
              s_cselect_b32 s7, {cnt_addr(CPROG)}, s100
              v_mov_b32 v48, s79
              v_mov_b32 v49, s7
              buffer_store_dword v48, v49, s[16:19], 0 offen sc1''')
    if TRACE:
        A(f'''s_memrealtime s[100:101]
              s_waitcnt lgkmcnt(0)
              v_mov_b32 v54, s100
              s_lshl_b32 s7, s79, 2
              s_lshl_b32 s101, s3, 8
              s_add_u32 s7, s7, s101
              s_add_u32 s7, s7, {TRC}
              v_mov_b32 v55, s7
              buffer_store_dword v54, v55, s[16:19], 0 offen''')
    stamp(A, 5)
    for kk in range(20):
        cur = 4*(kk%3); nxt = 4*((kk+2)%3)
        if kk < 18:
            A(f'ds_read_b128 v[{36+nxt}:{39+nxt}], v7 offset:{(kk+2)*64}')
            A(f'ds_read_b128 v[{80+nxt}:{83+nxt}], v2 offset:{(kk+2)*1024}')
            A('s_waitcnt lgkmcnt(4)')
        else:
            A(f's_waitcnt lgkmcnt({2*(19-kk)})')
        for tile in range(4):
            A(f'v_mfma_f32_16x16x32_bf16 v[{16+4*tile}:{19+4*tile}], {wr4(tile*20+kk)}, v[{36+cur}:{39+cur}], ' + (f'v[{16+4*tile}:{19+4*tile}]' if kk else '0'))
        A(f'v_mfma_f32_16x16x32_bf16 v[32:35], v[{36+cur}:{39+cur}], v[{80+cur}:{83+cur}], ' + ('v[32:35]' if kk else '0'))
    if FUSED: A('s_waitcnt vmcnt(2)\nv_readfirstlane_b32 s92, v53')
    A('s_nop 2')
    stamp(A, 0)
    A('''v_cvt_pk_bf16_f32 v48, v24, v25
         v_cvt_pk_bf16_f32 v49, v26, v27
         v_cvt_pk_bf16_f32 v44, v16, v17
         v_cvt_pk_bf16_f32 v45, v18, v19
         v_cvt_pk_bf16_f32 v46, v20, v21
         v_cvt_pk_bf16_f32 v47, v22, v23
         v_cvt_pk_bf16_f32 v50, v28, v29
         v_cvt_pk_bf16_f32 v51, v30, v31
         v_cvt_pk_bf16_f32 v52, v32, v33
         v_cvt_pk_bf16_f32 v53, v34, v35''')
    A(f's_cmp_eq_u32 s79, 63\ns_cbranch_scc1 {Lfin}')
    A(f'''s_lshl_b32 s7, s6, 9
          v_lshlrev_b32 v54, 3, v1
          v_add_u32 v54, s7, v54
          ds_write_b64 v54, v[52:53] offset:{C_VM}''')
    A('''v_mfma_f32_16x16x32_bf16 v[80:83], v[48:51], v[44:47], 0
         v_mfma_f32_16x16x32_bf16 v[84:87], v[56:59], v[44:47], 0
         v_mfma_f32_16x16x32_bf16 v[88:91], v[60:63], v[44:47], 0
         s_nop 5
         ds_write_b128 v109, v[80:83]
         ds_write_b128 v109, v[84:87] offset:1024
         ds_write_b128 v109, v[88:91] offset:2048
         buffer_store_dwordx4 v[48:51], v14, s[16:19], s82 offen sc1
         buffer_store_dwordx2 v[52:53], v15, s[16:19], s82 offen sc1
         s_waitcnt lgkmcnt(0)
         s_barrier''')
    stamp(A, 1)
    for w in range(4):
        A(f'ds_read_b128 v[{16+8*w}:{19+8*w}], v5 offset:{C_SC + w*3072}')
        A(f'ds_read_b128 v[{20+8*w}:{23+8*w}], v6 offset:{C_SC + w*3072}')
    A('s_waitcnt lgkmcnt(4)')
    for i in range(0, 8, 2): A(f'v_pk_add_f32 v[{80+i}:{81+i}], v[{16+i}:{17+i}], v[{24+i}:{25+i}]')
    A('s_waitcnt lgkmcnt(0)')
    for i in range(0, 8, 2): A(f'v_pk_add_f32 v[{32+i}:{33+i}], v[{32+i}:{33+i}], v[{40+i}:{41+i}]')
    for i in range(0, 8, 2): A(f'v_pk_add_f32 v[{80+i}:{81+i}], v[{80+i}:{81+i}], v[{32+i}:{33+i}]')
    A('v_lshlrev_b32 v54, 3, v1')
    for pt in range(4):
        A(f'ds_read_b64 v[{16+2*pt}:{17+2*pt}], v54 offset:{C_VM + pt*512}')
    A('v_mov_b32 v94, 0x3db504f3\nv_mov_b32 v95, 0x3db504f3')
    for i in range(0, 8, 2):
        A(f'''v_cvt_pk_bf16_f32 v92, v{80+i}, v{81+i}
              v_lshlrev_b32 v{80+i}, 16, v92
              v_and_b32 v{81+i}, 0xffff0000, v92
              v_pk_mul_f32 v[{80+i}:{81+i}], v[{80+i}:{81+i}], v[94:95]
              v_cvt_pk_bf16_f32 v92, v{80+i}, v{81+i}
              v_lshlrev_b32 v{80+i}, 16, v92
              v_and_b32 v{81+i}, 0xffff0000, v92''')
    A('v_mov_b32 v92, 0xff800000')
    for i in range(4): A(f'v_cndmask_b32 v{80+i}, v{80+i}, v92, s[76:77]')
    for i in range(4): A(f'v_cndmask_b32 v{84+i}, v{84+i}, v92, s[94:95]')
    A('''v_max3_f32 v92, v80, v81, v82
         v_max3_f32 v93, v83, v84, v85
         v_max3_f32 v92, v92, v86, v87
         v_max_f32 v92, v92, v93
         v_mov_b32 v93, v92
         s_nop 1
         v_permlane32_swap_b32 v92, v93
         v_max_f32 v92, v92, v93
         v_mov_b32 v93, v92
         s_nop 1
         v_permlane16_swap_b32 v92, v93
         v_max_f32 v92, v92, v93
         v_mov_b32 v94, 0x3fb8aa3b
         v_mov_b32 v95, 0x3fb8aa3b
         v_max_f32_dpp v92, v92, v92 row_ror:8 row_mask:0xf bank_mask:0xf
         v_mul_f32 v92, 0xbfb8aa3b, v92
         v_mov_b32 v93, v92''')
    for i in range(0, 8, 2): A(f'v_pk_fma_f32 v[{80+i}:{81+i}], v[{80+i}:{81+i}], v[94:95], v[92:93]')
    for i in range(8): A(f'v_exp_f32 v{80+i}, v{80+i}')
    A('''s_nop 0
         v_pk_add_f32 v[92:93], v[80:81], v[82:83]
         v_pk_add_f32 v[94:95], v[84:85], v[86:87]
         v_pk_add_f32 v[92:93], v[92:93], v[94:95]
         v_add_f32 v92, v92, v93
         v_mov_b32 v93, v92
         s_nop 1
         v_permlane32_swap_b32 v92, v93
         v_add_f32 v92, v92, v93
         v_mov_b32 v93, v92
         s_nop 1
         v_permlane16_swap_b32 v92, v93
         v_add_f32 v92, v92, v93
         s_nop 1
         v_add_f32_dpp v92, v92, v92 row_ror:8 row_mask:0xf bank_mask:0xf
         v_rcp_f32 v92, v92
         s_nop 0
         v_mov_b32 v93, v92''')
    for i in range(0, 8, 2): A(f'v_pk_mul_f32 v[{80+i}:{81+i}], v[{80+i}:{81+i}], v[92:93]')
    A('''v_cvt_pk_bf16_f32 v48, v80, v81
         v_cvt_pk_bf16_f32 v49, v82, v83
         v_cvt_pk_bf16_f32 v44, v84, v85
         v_cvt_pk_bf16_f32 v45, v86, v87
         s_nop 0
         v_mov_b32_dpp v46, v48 row_shl:8 row_mask:0xf bank_mask:0xf
         v_mov_b32_dpp v47, v49 row_shl:8 row_mask:0xf bank_mask:0xf
         s_waitcnt lgkmcnt(0)
         s_nop 0''')
    for pt in range(4):
        A(f'v_mfma_f32_16x16x32_bf16 v[{80+4*pt}:{83+4*pt}], v[{64+4*pt}:{67+4*pt}], v[44:47], 0')
    for pt in range(4):
        A(f'v_mfma_f32_16x16x16_bf16 v[{80+4*pt}:{83+4*pt}], v[{16+2*pt}:{17+2*pt}], v[48:49], v[{80+4*pt}:{83+4*pt}]')
    A(f'''s_add_u32 s80, s80, {32*8192}
          s_add_u32 s81, s81, {32*8192}
          s_add_u32 s82, s82, 65536
          s_nop 1''')
    for pt in range(4):
        A(f'''v_cvt_pk_bf16_f32 v{96+2*pt}, v{80+4*pt}, v{81+4*pt}
              v_cvt_pk_bf16_f32 v{97+2*pt}, v{82+4*pt}, v{83+4*pt}''')
    A('s_nop 1')
    def accT(T): return 16+4*T
    def merged_store(P):
        a = accT(2*P); b = accT(2*P+1)
        for r in range(4): A(f'v_mov_b32_dpp v{a+r}, v{b+r} row_shr:8 row_mask:0xf bank_mask:0xc')
        for r in range(4): A(f'v_and_or_b32 v{a+r}, v{a+r}, s78, v111')
        A(f'buffer_store_dwordx4 v[{a}:{a+3}], v10, s[16:19], {"0" if P < 4 else "s86"} offen offset:{(P&3)*1024} sc1')
    for P in range(5):
        for T in (2*P, 2*P+1):
            a = accT(T)
            A(f'v_mfma_f32_16x16x32_bf16 v[{a}:{a+3}], v[{worg(T,0)}:{worg(T,0)+3}], v[96:99], 0')
        for T in (2*P, 2*P+1):
            a = accT(T)
            A(f'v_mfma_f32_16x16x32_bf16 v[{a}:{a+3}], v[{worg(T,1)}:{worg(T,1)+3}], v[100:103], v[{a}:{a+3}]')
        if P >= 1: merged_store(P-1)
    A('s_nop 1')
    merged_store(4)
    if FUSED:
        Lok = A.newlabel('cok'); Lw = A.newlabel('cw')
        A(f's_cmp_ge_u32 s92, 64\ns_cbranch_scc1 {Lok}\nv_mov_b32 v96, s91\ns_mov_b32 s90, 0')
        A.label(Lw)
        A(f'''s_add_u32 s90, s90, 1
              s_cmp_gt_u32 s90, 400000
              s_cbranch_scc1 {Lend}
              buffer_load_dword v97, v96, s[16:19], 0 offen sc1
              s_waitcnt vmcnt(0)
              v_readfirstlane_b32 s7, v97
              s_cmp_ge_u32 s7, 64
              s_cbranch_scc0 {Lw}''')
        A.label(Lok)
    kv_prefetch()
    stamp(A, 2)
    A(f's_cmp_ge_u32 s3, 40\ns_cbranch_scc1 {Lnored}')
    if ADAPT: dsleep(A, 93)
    else:
        for _ in range(D1): A('s_sleep 2')
    Lp = A.newlabel('cpollB')
    A('s_mov_b32 s90, 0')
    A.label(Lp)
    A(f's_add_u32 s90, s90, 1\ns_cmp_gt_u32 s90, 400000\ns_cbranch_scc1 {Lend}')
    for k in range(8):
        A(f's_mov_b32 s7, {k*8*20480}\nbuffer_load_dwordx4 v[{16+4*k}:{19+4*k}], v11, s[16:19], s7 offen sc1')
    A('s_waitcnt vmcnt(0)')
    Lodd = A.newlabel('codd'); Lrdy = A.newlabel('crdy')
    A(f's_bitcmp1_b32 s79, 0\ns_cbranch_scc1 {Lodd}')
    for i in range(0, 32, 4):
        A(f'v_and_b32 v{48+i//4}, v{16+i}, v{17+i}\nv_and_b32 v{96+i//4}, v{18+i}, v{19+i}')
    for i in range(8): A(f'v_and_b32 v{48+i}, v{48+i}, v{96+i}')
    A('''v_and_b32 v48, v48, v49
         v_and_b32 v50, v50, v51
         v_and_b32 v52, v52, v53
         v_and_b32 v54, v54, v55
         v_and_b32 v48, v48, v50
         v_and_b32 v52, v52, v54
         v_and_b32 v48, v48, v52
         v_and_b32 v48, 1, v48
         v_cmp_eq_u32 vcc, 0, v48''')
    A(f's_and_b64 exec, exec, vcc\ns_cbranch_execnz {Lp}\ns_branch {Lrdy}')
    A.label(Lodd)
    for i in range(0, 30, 3): A(f'v_or3_b32 v{48+i//3 if i//3 < 8 else 96+i//3-8}, v{16+i}, v{17+i}, v{18+i}')
    A('''v_or3_b32 v48, v48, v49, v50
         v_or3_b32 v51, v51, v52, v53
         v_or3_b32 v54, v54, v55, v96
         v_or3_b32 v97, v97, v46, v47
         v_or3_b32 v48, v48, v51, v54
         v_or_b32 v48, v48, v97
         v_and_b32 v48, 1, v48
         v_cmp_ne_u32 vcc, 0, v48''')
    A(f's_and_b64 exec, exec, vcc\ns_cbranch_execnz {Lp}')
    A.label(Lrdy)
    A('s_mov_b64 exec, -1')
    if ADAPT: dadapt(A, 93)
    for k in range(0, 16, 2): A(f'v_pk_add_f32 v[{16+k}:{17+k}], v[{16+k}:{17+k}], v[{32+k}:{33+k}]')
    for k in range(0, 8, 2): A(f'v_pk_add_f32 v[{16+k}:{17+k}], v[{16+k}:{17+k}], v[{24+k}:{25+k}]')
    for k in range(0, 4, 2): A(f'v_pk_add_f32 v[{16+k}:{17+k}], v[{16+k}:{17+k}], v[{20+k}:{21+k}]')
    for r in range(4): A(f'v_mov_b32 v{20+r}, v{16+r}')
    A('s_nop 1')
    for r in range(4): A(f'v_permlane32_swap_b32 v{16+r}, v{20+r}')
    for r in range(0, 4, 2): A(f'v_pk_add_f32 v[{16+r}:{17+r}], v[{16+r}:{17+r}], v[{20+r}:{21+r}]')
    for r in range(4): A(f'v_mov_b32 v{20+r}, v{16+r}')
    A('s_nop 1')
    for r in range(4): A(f'v_permlane16_swap_b32 v{16+r}, v{20+r}')
    for r in range(0, 4, 2): A(f'v_pk_add_f32 v[{16+r}:{17+r}], v[{16+r}:{17+r}], v[{20+r}:{21+r}]')
    A('s_nop 1')
    for r in range(4): A(f'v_add_f32_dpp v{16+r}, v{16+r}, v{16+r} row_ror:8 row_mask:0xf bank_mask:0xf')
    Lnp = A.newlabel('cnopub')
    A('''v_cvt_pk_bf16_f32 v20, v16, v17
         v_cvt_pk_bf16_f32 v21, v18, v19
         v_mov_b32 v22, 0x7fff7fff
         v_cmp_eq_u32 vcc, -1, v20
         s_nop 1
         v_cndmask_b32 v20, v20, v22, vcc
         v_cmp_eq_u32 vcc, -1, v21
         s_nop 1
         v_cndmask_b32 v21, v21, v22, vcc
         buffer_store_dwordx2 v[20:21], v12, s[16:19], s83 offen sc1''')
    A.label(Lnp)
    Lgo = A.newlabel('cgo')
    if ADAPT:
        A.label(Lnored)
        dsleep(A, 94)
    else:
        for _ in range(D2): A('s_sleep 2')
        A(f's_branch {Lgo}')
        A.label(Lnored)
        for _ in range(D3): A('s_sleep 2')
    A.label(Lgo)
    stamp(A, 3)
    Lg = A.newlabel('cpollA')
    A('s_mov_b32 s90, 0')
    A.label(Lg)
    A(f's_add_u32 s90, s90, 1\ns_cmp_gt_u32 s90, 400000\ns_cbranch_scc1 {Lend}')
    for k in range(5):
        A(f's_add_u32 s7, s83, {k*4096}\nbuffer_load_dwordx2 v[{24+2*k}:{25+2*k}], v13, s[16:19], s7 offen sc1')
    A('s_waitcnt vmcnt(0)')
    A('''v_max3_u32 v34, v24, v25, v26
         v_max3_u32 v35, v27, v28, v29
         v_max3_u32 v36, v30, v31, v32
         v_max3_u32 v34, v34, v35, v33
         v_max_u32 v34, v34, v36
         v_cmp_eq_u32 vcc, -1, v34''')
    A(f's_and_b64 exec, exec, vcc\ns_cbranch_execnz {Lg}\ns_mov_b64 exec, -1')
    if ADAPT: dadapt(A, 94)
    stamp(A, 4)
    for k in range(5):
        A(f'ds_write_b64 v{104+k}, v[{24+2*k}:{25+2*k}]')
    def cch_signal_OLD():
        A(f'''s_lshl_b32 s7, s3, 4
              s_lshl_b32 s100, s6, 2
              s_add_u32 s7, s7, s100
              s_add_u32 s7, s7, {cnt_addr(CCH)}
              s_add_u32 s100, s79, 1
              v_mov_b32 v40, s100
              v_mov_b32 v41, s7
              v_cmp_eq_u32 vcc, 0, v1
              s_and_saveexec_b64 s[84:85], vcc
              buffer_store_dword v40, v41, s[16:19], 0 offen sc1
              s_mov_b64 exec, s[84:85]''')
    A(f'''s_add_u32 s79, s79, 1
          s_add_u32 s83, s83, 20480
          s_add_u32 s87, s87, 10240
          s_add_u32 s88, s88, 10240
          v_xor_b32 v111, 1, v111
          s_branch {Ltop}''')
    A.label(Lfin)
    A('''buffer_store_dwordx4 v[48:51], v14, s[16:19], s82 offen sc1
         buffer_store_dwordx2 v[52:53], v15, s[16:19], s82 offen sc1''')
    if FUSED:
        A('s_waitcnt vmcnt(0)')
        cch_signal(1)
    A.label(Lend)
    A('s_mov_b64 exec, -1')
    if PROF:
        for i in range(6): A(f'v_mov_b32 v{16+i}, s{92+i}')
        A(f'''s_lshl_b32 s7, s3, 7
              s_lshl_b32 s37, s6, 5
              s_add_u32 s7, s7, s37
              s_add_u32 s7, s7, {FLAGS}
              v_mov_b32 v24, s7
              buffer_store_dwordx4 v[16:19], v24, s[16:19], 0 offen
              buffer_store_dwordx2 v[20:21], v24, s[16:19], 0 offen offset:16''')

def task_init(A):
    A(f'''s_lshl_b32 s4, s3, 12
          v_lshlrev_b32 v1, 4, v0
          v_add_u32 v1, s4, v1
          v_mov_b32 v4, 0
          v_mov_b32 v5, 0
          v_mov_b32 v6, 0
          v_mov_b32 v7, 0
          v_mov_b32 v8, -1
          v_mov_b32 v9, -1
          v_mov_b32 v10, -1
          v_mov_b32 v11, -1''')
    for p in range(5):
        A(f's_mov_b32 s5, {PART + p*262144}\nbuffer_store_dwordx4 v[4:7], v1, s[16:19], s5 offen')
    for p in range(3):
        A(f's_mov_b32 s5, {MEMB + p*262144}\nbuffer_store_dwordx4 v[8:11], v1, s[16:19], s5 offen')

if __name__ == '__main__':
    build([('init_kernel', 64, 0, task_init, (256, 256)),
           ('proj_kernel', 1536, P_LDS, task_P, (256, 256)),
           ('chain_kernel', 64, C_LDS, task_chain, (512, 256))], 't2.s')
    print('C_LDS', C_LDS)
```

```python
from asmlib import *
from layout import *
from gen import *
from post import softmax12, round_scale12

MSTR   = 1344
C_MEM  = 0
C_SC   = 12160
C_VM   = C_SC + 12288
C_RD   = C_VM + 2048
C_WO   = C_RD + 2048
C_STG  = C_WO + 81920
SSTR   = 656
C_LDS  = C_STG + 2*32*SSTR

def wreg(f):
    return ('a', 4*f) if f < 64 else ('v', 192 + 4*(f-64))
def worg(T, kk):
    return 112 + 4*(2*T+kk)
D1, D2, D3 = 0, 0, 0
ADAPT = None
def dsleep(A, sreg):
    L = A.newlabel('dsl'); A(f's_mov_b32 s7, s{sreg}'); A.label(L); A(f's_sleep 1\ns_sub_u32 s7, s7, 1\ns_cmp_gt_i32 s7, 0\ns_cbranch_scc1 {L}')
def dadapt(A, sreg):
    dec, inc = ADAPT
    A(f'''s_cmp_eq_u32 s90, 1
          s_cselect_b32 s7, {-dec & 0xffffffff}, {inc}
          s_add_i32 s{sreg}, s{sreg}, s7
          s_max_i32 s{sreg}, s{sreg}, 1''')
def wr4(f):
    t, b = wreg(f); return f'{t}[{b}:{b+3}]'
def wr2(f, hf):
    t, b = wreg(f); return f'{t}[{b+2*hf}:{b+2*hf+1}]'

PROF = False
def stamp(A, i):
    if TRACE:
        A(f'''s_memrealtime s[100:101]
              s_waitcnt lgkmcnt(0)
              v_mov_b32 v102, s100
              s_lshl_b32 s7, s3, 2
              s_add_u32 s7, s7, s6
              s_lshl_b32 s7, s7, 6
              s_add_u32 s7, s7, s79
              s_lshl_b32 s7, s7, 5
              s_add_u32 s7, s7, {TRC + (1<<20) + 4*i}
              v_mov_b32 v103, s7
              buffer_store_dword v102, v103, s[16:19], 0 offen''')
        return
    if not PROF: return
    A(f'''s_memtime s[98:99]
          s_waitcnt lgkmcnt(0)
          s_sub_u32 s100, s98, s91
          s_mov_b32 s91, s98
          s_add_u32 s{92+i}, s{92+i}, s100''')

FUSED = False
TRACE = False
TRC = 110*MB
CKV, CQ, CF1, CF2, CF3, CG_, CCH, CT, CPROG = 0, 16, 32, 33, 34, 66, 67, 131, 200
def cnt_addr(i): return FLAGS + 64*i

def task_chain(A, standalone=True):
    if FUSED:
        A(f'''v_lshlrev_b32 v1, 4, v0
              v_mov_b32 v4, 0
              v_mov_b32 v5, 0
              v_mov_b32 v6, 0
              v_mov_b32 v7, 0
              v_mov_b32 v8, -1
              v_mov_b32 v9, -1
              v_mov_b32 v10, -1
              v_mov_b32 v11, -1
              s_mul_i32 s4, s3, 20480
              s_add_u32 s4, s4, {PART}''')
        for p in range(5):
            A(f'buffer_store_dwordx4 v[4:7], v1, s[16:19], s4 offen sc1\ns_add_u32 s4, s4, 4096')
        A(f'''s_mul_i32 s4, s3, 20480
              s_add_u32 s4, s4, {MEMB}''')
        for p in range(5):
            A(f'buffer_store_dwordx4 v[8:11], v1, s[16:19], s4 offen sc1\ns_add_u32 s4, s4, 4096')
        A(f'''
              s_lshl_b32 s4, s3, 12
              s_add_u32 s4, s4, {FLAGS}
              s_cmp_lt_u32 s3, 5
              s_cselect_b32 s4, s4, 0x7ff00000
              buffer_store_dwordx4 v[4:7], v1, s[16:19], s4 offen sc1
              s_waitcnt vmcnt(0)
              s_barrier
              v_mov_b32 v4, 1
              v_mov_b32 v5, 128
              v_cmp_eq_u32 vcc, 0, v0
              s_and_saveexec_b64 s[84:85], vcc
              buffer_atomic_add v4, v5, s[96:99], 0 offen
              s_mov_b64 exec, s[84:85]''')
    srd(A, 12, I_WQ, 640*8192); srd(A, 24, I_WK, 640*8192); srd(A, 28, I_WV, 640*8192); srd(A, 68, I_WO, 4096*1280); srd(A, 72, I_MEM0, 10240)
    A('''s_lshr_b32 s4, s3, 1          ; head
         s_and_b32 s5, s3, 1           ; half j
         v_and_b32 v1, 63, v0
         v_lshrrev_b32 v2, 6, v0
         s_nop 0
         v_readfirstlane_b32 s6, v2    ; wave
         v_and_b32 v3, 15, v1          ; rho / i
         v_lshrrev_b32 v4, 4, v1       ; g
         v_lshrrev_b32 v5, 2, v3       ; rho>>2
         v_and_b32 v6, 3, v3           ; rho&3''')
    A(f'''v_lshrrev_b32 v8, 4, v0
          v_and_b32 v9, 15, v0
          v_lshlrev_b32 v10, 13, v8
          v_lshl_add_u32 v10, v9, 4, v10
          s_lshl_b32 s7, s4, 8
          v_add_u32 v10, s7, v10          ; q/k rows 0..15
          v_add_u32 v11, {16*8192}, v10   ; rows 16..31
          v_mul_u32_u24 v12, {SSTR}, v8
          v_lshl_add_u32 v12, v9, 4, v12
          v_add_u32 v12, {C_STG}, v12
          v_lshrrev_b32 v8, 3, v0
          v_and_b32 v9, 7, v0
          v_lshlrev_b32 v13, 13, v8
          v_lshl_add_u32 v13, v9, 4, v13
          s_lshl_b32 s37, s5, 7
          s_add_u32 s7, s7, s37
          v_add_u32 v13, s7, v13          ; v global
          v_mul_u32_u24 v14, {SSTR}, v8
          v_lshl_add_u32 v14, v9, 4, v14
          v_add_u32 v14, {C_STG+512}, v14''')
    A(f'''v_lshl_add_u32 v8, v4, 3, v5
          v_mul_u32_u24 v15, {SSTR}, v8
          v_lshl_add_u32 v15, v6, 4, v15       ; + 8c*2
          v_add_u32 v15, {C_STG}, v15
          s_lshl_b32 s7, s6, 6                 ; 32w*2
          v_add_u32 v16, s7, v15               ; q/k base
          s_lshr_b32 s7, s6, 1
          s_lshl_b32 s7, s7, 6                 ; 32(w>>1)*2
          s_and_b32 s37, s6, 1
          s_lshl_b32 s37, s37, 3               ; 4(w&1)*2
          s_add_u32 s7, s7, s37
          s_add_u32 s7, s7, 512
          v_add_u32 v17, s7, v15               ; v base''')
    def wl_issue(kk):
        b = 44 + 20*(kk%3)
        A(f's_mov_b32 s38, {kk*32*8192}')
        A(f'''buffer_load_dwordx4 v[{b}:{b+3}], v10, s[12:15], s38 offen
              buffer_load_dwordx4 v[{b+4}:{b+7}], v11, s[12:15], s38 offen
              buffer_load_dwordx4 v[{b+8}:{b+11}], v10, s[24:27], s38 offen
              buffer_load_dwordx4 v[{b+12}:{b+15}], v11, s[24:27], s38 offen
              buffer_load_dwordx4 v[{b+16}:{b+19}], v13, s[28:31], s38 offen''')
    def wl_write(kk):
        o = (kk&1)*32*SSTR; b = 44 + 20*(kk%3)
        A(f'''ds_write_b128 v12, v[{b}:{b+3}] offset:{o}
              ds_write_b128 v12, v[{b+4}:{b+7}] offset:{o+16*SSTR}
              ds_write_b128 v12, v[{b+8}:{b+11}] offset:{o+256}
              ds_write_b128 v12, v[{b+12}:{b+15}] offset:{o+16*SSTR+256}
              ds_write_b128 v14, v[{b+16}:{b+19}] offset:{o}''')
    def wl_read(kk, buf):
        o = buf*32*SSTR
        for tile in range(4):
            for hf in range(2):
                off = o + 4*hf*SSTR + (tile>>1)*256 + (tile&1)*8
                A(f'ds_read_b64_tr_b16 {wr2(tile*20+kk, hf)}, v16 offset:{off}')
        for hf in range(2):
            A(f'ds_read_b64_tr_b16 v[{40+2*hf}:{41+2*hf}], v17 offset:{o+4*hf*SSTR}')
        A(f's_waitcnt lgkmcnt(0)\nds_write_b128 v18, v[40:43] offset:{kk*1024}')
    A(f'''s_mul_i32 s7, s6, 20480
          s_add_u32 s7, s7, {C_WO}
          v_lshlrev_b32 v18, 4, v1
          v_add_u32 v18, s7, v18''')
    wl_issue(0); wl_issue(1); wl_issue(2)
    for kk in range(20):
        A(f's_waitcnt vmcnt({5*min(2, 19-kk)})')
        wl_write(kk)
        A('s_waitcnt lgkmcnt(0)')
        if kk < 17: wl_issue(kk+3)
        A('s_barrier')
        wl_read(kk, kk&1)
    A('s_waitcnt lgkmcnt(0)\ns_barrier')
    WSTR = 1296
    A(f'''s_lshl_b32 s7, s4, 7
          s_lshl_b32 s37, s5, 6
          s_add_u32 s7, s7, s37               ; h*128 + 64j
          s_lshl_b32 s37, s6, 3
          s_add_u32 s7, s7, s37               ; + 8w
          s_mul_i32 s7, s7, 1280
          v_lshlrev_b32 v10, 4, v1
          v_add_u32 v10, s7, v10              ; global x4
          v_lshlrev_b32 v11, 2, v1
          v_add_u32 v11, s7, v11
          v_add_u32 v11, 1024, v11            ; global x1
          s_mul_i32 s7, s37, {WSTR}
          s_add_u32 s7, s7, {C_STG}
          v_lshlrev_b32 v12, 4, v1
          v_add_u32 v12, s7, v12              ; lds x4
          v_lshlrev_b32 v13, 2, v1
          v_add_u32 v13, s7, v13
          v_add_u32 v13, 1024, v13            ; lds x1
          v_lshl_add_u32 v8, v4, 3, v5
          v_mul_u32_u24 v15, {WSTR}, v8
          v_lshl_add_u32 v15, v6, 3, v15      ; + 4c*2
          s_mul_i32 s7, s6, 320
          s_add_u32 s7, s7, {C_STG}
          v_add_u32 v15, s7, v15
          s_mul_i32 s7, s6, 20480
          s_add_u32 s7, s7, {C_WO}
          v_lshlrev_b32 v16, 4, v1
          v_add_u32 v16, s7, v16''')
    for kk in range(2):
        if kk == 0:
            for k2 in range(2):
                for rr in range(8):
                    A(f's_mov_b32 s38, {(k2*32+rr)*1280}')
                    A(f'buffer_load_dwordx4 v[{20+40*k2+4*rr}:{23+40*k2+4*rr}], v10, s[68:71], s38 offen')
                    A(f'buffer_load_dword v{52+40*k2+rr}, v11, s[68:71], s38 offen')
        A(f's_waitcnt vmcnt({16 if kk == 0 else 0})')
        for rr in range(8):
            A(f'ds_write_b128 v12, v[{20+40*kk+4*rr}:{23+40*kk+4*rr}] offset:{rr*WSTR}')
            A(f'ds_write_b32 v13, v{52+40*kk+rr} offset:{rr*WSTR}')
        A('s_waitcnt lgkmcnt(0)\ns_barrier')
        for T in range(10):
            for hf in range(2):
                A(f'ds_read_b64_tr_b16 v[{worg(T,kk)+2*hf}:{worg(T,kk)+2*hf+1}], v15 offset:{4*hf*WSTR + T*32}')
        A('s_waitcnt lgkmcnt(0)\ns_barrier')
    A('v_mov_b32 v2, v16')
    A(f'''v_min_u32 v7, 8, v3
          v_mul_u32_u24 v7, {MSTR}, v7
          v_lshl_add_u32 v7, v4, 4, v7
          v_add_u32 v7, {C_MEM}, v7''')
    A(f'''v_lshl_add_u32 v8, v5, 3, v6
          v_lshlrev_b32 v8, 13, v8
          v_lshl_add_u32 v8, v4, 4, v8
          s_lshl_b32 s7, s4, 8
          s_lshl_b32 s37, s6, 6
          s_add_u32 s7, s7, s37
          s_add_u32 s7, s7, {KX}
          v_add_u32 v8, s7, v8''')
    A(f'''v_lshl_add_u32 v9, v5, 3, v6
          v_lshlrev_b32 v9, 6, v9
          v_lshl_add_u32 v9, v4, 4, v9
          s_lshl_b32 s7, s4, 13
          s_lshl_b32 s37, s5, 12
          s_add_u32 s7, s7, s37
          s_add_u32 s7, s7, {VXT}
          v_add_u32 v9, s7, v9''')
    A(f'''v_and_b32 v20, 7, v3
          v_lshl_add_u32 v10, v4, 3, v20
          v_lshlrev_b32 v10, 4, v10
          v_lshrrev_b32 v20, 3, v3
          v_lshl_add_u32 v10, v20, 9, v10
          s_mul_i32 s7, s3, 20480
          s_mul_i32 s37, s6, 5120
          s_add_u32 s7, s7, s37
          s_add_u32 s7, s7, {PART}
          v_add_u32 v10, s7, v10''')
    A(f'''v_lshrrev_b32 v11, 3, v1
          v_mul_u32_u24 v11, 20480, v11
          v_and_b32 v20, 7, v1
          v_lshl_add_u32 v11, v20, 4, v11
          s_lshl_b32 s7, s6, 7
          s_lshl_b32 s37, s3, 9
          s_add_u32 s7, s7, s37
          s_add_u32 s7, s7, {PART}
          v_add_u32 v11, s7, v11''')
    A(f'''v_lshlrev_b32 v12, 3, v1
          s_lshl_b32 s7, s3, 9
          s_lshl_b32 s37, s6, 7
          s_add_u32 s7, s7, s37
          s_add_u32 s7, s7, {MEMB}
          v_add_u32 v12, s7, v12
          v_cmp_lt_u32 vcc, 7, v1
          v_mov_b32 v20, 0x7ff00000
          s_nop 1
          v_cndmask_b32 v12, v12, v20, vcc''')
    A(f'''v_lshrrev_b32 v13, 3, v0
          v_lshlrev_b32 v13, 7, v13
          v_and_b32 v20, 7, v0
          v_lshl_add_u32 v13, v20, 3, v13
          v_add_u32 v13, {MEMB}, v13''')
    for k in range(5):
        A(f'''v_add_u32 v20, {k*256}, v0
              v_mul_u32_u24 v21, 52429, v20
              v_lshrrev_b32 v21, 23, v21          ; i = idx/160
              v_mul_u32_u24 v22, 160, v21
              v_sub_u32 v22, v20, v22
              v_mul_u32_u24 v21, {MSTR}, v21
              v_lshl_add_u32 v21, v22, 3, v21
              v_add_u32 v{96+k}, {C_MEM}, v21
              v_and_b32 v21, 7, v20
              v_lshrrev_b32 v22, 3, v20
              v_mul_u32_u24 v21, {MSTR}, v21
              v_lshl_add_u32 v21, v22, 3, v21
              v_add_u32 v{104+k}, {C_MEM}, v21''')
    A(f'''v_lshlrev_b32 v14, 8, v3
          v_lshl_add_u32 v14, v4, 4, v14
          s_lshl_b32 s7, s4, 11
          s_lshl_b32 s37, s6, 6
          s_add_u32 s7, s7, s37
          s_add_u32 s7, s7, {KM}
          s_cmp_eq_u32 s5, 0
          s_cselect_b32 s7, s7, 0x7ff00000
          v_add_u32 v14, s7, v14
          v_cmp_lt_u32 vcc, 7, v3
          v_mov_b32 v20, 0x7ff00000
          s_nop 1
          v_cndmask_b32 v14, v14, v20, vcc''')
    A(f'''v_lshl_add_u32 v15, v5, 3, v6
          v_lshlrev_b32 v15, 4, v15
          v_lshl_add_u32 v15, v4, 3, v15
          s_lshl_b32 s7, s4, 11
          s_lshl_b32 s37, s5, 10
          s_add_u32 s7, s7, s37
          s_lshr_b32 s37, s6, 1
          s_lshl_b32 s37, s37, 9
          s_add_u32 s7, s7, s37
          s_and_b32 s37, s6, 1
          s_lshl_b32 s37, s37, 6
          s_add_u32 s7, s7, s37
          s_add_u32 s7, s7, {VMT}
          v_add_u32 v15, s7, v15
          v_cmp_lt_u32 vcc, 1, v4
          v_mov_b32 v20, 0x7ff00000
          s_nop 1
          v_cndmask_b32 v15, v15, v20, vcc''')
    A(f'''v_lshlrev_b32 v110, 4, v1
          s_mul_i32 s7, s6, 3072
          s_add_u32 s7, s7, {C_SC}
          v_add_u32 v109, s7, v110
          v_mov_b32 v111, 1
          s_mov_b32 s76, 0
          s_mov_b32 s77, 0x00ff00ff
          s_mov_b32 s94, 0xff00ff00
          s_mov_b32 s95, 0xff00ff00
          v_subrev_u32 v5, 128, v110
          v_add_u32 v5, 2048, v5
          v_mov_b32 v6, v5
          v_cmp_gt_u32 vcc, 8, v3
          v_add_u32 v20, 1024, v110
          s_nop 0
          v_cndmask_b32 v5, v5, v110, vcc
          v_cndmask_b32 v6, v6, v20, vcc
          s_mov_b32 s78, 0xfffffffe
          s_mov_b32 s79, 0              ; step
          s_mov_b32 s80, 0              ; seg*32*8192
          s_mov_b32 s81, {4*8192}       ; seg*32*8192 + 4*8192
          s_mov_b32 s82, 0              ; seg*65536
          s_mov_b32 s83, 0              ; step*10240
          s_mov_b32 s87, 4096
          s_mov_b32 s88, 8192
          s_mov_b32 s86, 4096
          s_mov_b32 s89, 8192''')
    if ADAPT:
        A(f'''s_mov_b32 s93, {2*D1}
              s_cmp_lt_u32 s3, 40
              s_cselect_b32 s94, {2*D2}, {2*D3}''')
    A(f'''v_mov_b32 v20, 0
          v_mov_b32 v21, 0
          v_lshlrev_b32 v22, 3, v0
          v_add_u32 v22, {C_MEM + 8*MSTR}, v22
          v_cmp_gt_u32 vcc, 160, v0
          s_and_saveexec_b64 s[84:85], vcc
          ds_write_b64 v22, v[20:21]
          s_mov_b64 exec, s[84:85]
          v_lshlrev_b32 v22, 3, v0''')
    for k in range(5):
        A(f'buffer_load_dwordx2 v[{24+2*k}:{25+2*k}], v22, s[72:75], {["0","0","s86","s86","s89"][k]} offen offset:{(k&1)*2048}')
    def kv_prefetch():
        A(f'''buffer_load_dwordx4 v[56:59], v8, s[16:19], s80 offen sc1
              buffer_load_dwordx4 v[60:63], v8, s[16:19], s81 offen sc1''')
        for pt in range(4):
            A(f'buffer_load_dwordx4 v[{64+4*pt}:{67+4*pt}], v9, s[16:19], s80 offen offset:{(32*(pt>>1)+4*(pt&1))*64} sc1')
    Lend = A.newlabel('cend')
    if FUSED:
        A('s_waitcnt vmcnt(0)')
        for (srdn, off, tgt) in (('s[96:99]', 128, 64), ('s[16:19]', cnt_addr(CKV), 64)):
            Lw = A.newlabel('cw')
            A(f'v_mov_b32 v40, {off}\ns_mov_b32 s90, 0')
            A.label(Lw)
            A(f'''s_add_u32 s90, s90, 1
                  s_cmp_gt_u32 s90, 400000
                  s_cbranch_scc1 {Lend}
                  buffer_load_dword v41, v40, {srdn}, 0 offen sc1
                  s_waitcnt vmcnt(0)
                  v_readfirstlane_b32 s7, v41
                  s_cmp_ge_u32 s7, {tgt}
                  s_cbranch_scc0 {Lw}''')
    kv_prefetch()
    A('s_waitcnt vmcnt(6)')
    for k in range(5):
        A(f'ds_write_b64 v{96+k}, v[{24+2*k}:{25+2*k}]')
    Ltop = A.newlabel('ctop'); Lnored = A.newlabel('cnored'); Lfin = A.newlabel('cfin')
    if PROF:
        for i in range(6): A(f's_mov_b32 s{92+i}, 0')
        A('s_memtime s[98:99]\ns_waitcnt lgkmcnt(0)\ns_mov_b32 s91, s98')
    A.label(Ltop)
    A('s_waitcnt lgkmcnt(0)\ns_barrier')
    for kk in range(2):
        A(f'ds_read_b128 v[{36+4*kk}:{39+4*kk}], v7 offset:{kk*64}\nds_read_b128 v[{80+4*kk}:{83+4*kk}], v2 offset:{kk*1024}')
    def cch_signal(add):
        A(f'''s_lshl_b32 s7, s3, 4
              s_lshl_b32 s100, s6, 2
              s_add_u32 s7, s7, s100
              s_add_u32 s7, s7, {cnt_addr(CCH)}
              s_add_u32 s100, s79, {add}
              v_mov_b32 v54, s100
              v_mov_b32 v55, s7
              v_cmp_eq_u32 vcc, 0, v1
              s_and_saveexec_b64 s[84:85], vcc
              buffer_store_dword v54, v55, s[16:19], 0 offen sc1
              s_mov_b64 exec, s[84:85]''')
    if FUSED:
        A(f'''s_add_u32 s7, s79, 1
              s_lshr_b32 s7, s7, 2
              s_lshl_b32 s7, s7, 6
              s_add_u32 s91, s7, {cnt_addr(CKV)}
              v_mov_b32 v52, s91
              buffer_load_dword v53, v52, s[16:19], 0 offen sc1''')
        cch_signal(0)
        A(f'''s_or_b32 s7, s3, s6
              s_cmp_eq_u32 s7, 0
              s_mov_b32 s100, 0x7ff00000
              s_cselect_b32 s7, {cnt_addr(CPROG)}, s100
              v_mov_b32 v48, s79
              v_mov_b32 v49, s7
              buffer_store_dword v48, v49, s[16:19], 0 offen sc1''')
    if TRACE:
        A(f'''s_memrealtime s[100:101]
              s_waitcnt lgkmcnt(0)
              v_mov_b32 v54, s100
              s_lshl_b32 s7, s79, 2
              s_lshl_b32 s101, s3, 8
              s_add_u32 s7, s7, s101
              s_add_u32 s7, s7, {TRC}
              v_mov_b32 v55, s7
              buffer_store_dword v54, v55, s[16:19], 0 offen''')
    stamp(A, 5)
    for kk in range(20):
        cur = 4*(kk%3); nxt = 4*((kk+2)%3)
        if kk < 18:
            A(f'ds_read_b128 v[{36+nxt}:{39+nxt}], v7 offset:{(kk+2)*64}')
            A(f'ds_read_b128 v[{80+nxt}:{83+nxt}], v2 offset:{(kk+2)*1024}')
            A('s_waitcnt lgkmcnt(4)')
        else:
            A(f's_waitcnt lgkmcnt({2*(19-kk)})')
        for tile in range(4):
            A(f'v_mfma_f32_16x16x32_bf16 v[{16+4*tile}:{19+4*tile}], {wr4(tile*20+kk)}, v[{36+cur}:{39+cur}], ' + (f'v[{16+4*tile}:{19+4*tile}]' if kk else '0'))
        A(f'v_mfma_f32_16x16x32_bf16 v[32:35], v[{36+cur}:{39+cur}], v[{80+cur}:{83+cur}], ' + ('v[32:35]' if kk else '0'))
    if FUSED: A('s_waitcnt vmcnt(2)\nv_readfirstlane_b32 s92, v53')
    A('s_nop 2')
    stamp(A, 0)
    A('''v_cvt_pk_bf16_f32 v44, v16, v17
         v_cvt_pk_bf16_f32 v45, v18, v19
         v_cvt_pk_bf16_f32 v46, v20, v21
         v_cvt_pk_bf16_f32 v47, v22, v23
         v_cvt_pk_bf16_f32 v48, v24, v25
         v_cvt_pk_bf16_f32 v49, v26, v27
         v_cvt_pk_bf16_f32 v50, v28, v29
         v_cvt_pk_bf16_f32 v51, v30, v31
         v_cvt_pk_bf16_f32 v52, v32, v33
         v_cvt_pk_bf16_f32 v53, v34, v35''')
    A(f's_cmp_eq_u32 s79, 63\ns_cbranch_scc1 {Lfin}')
    A(f'''v_mfma_f32_16x16x32_bf16 v[84:87], v[56:59], v[44:47], 0
         v_mfma_f32_16x16x32_bf16 v[88:91], v[60:63], v[44:47], 0
         v_mfma_f32_16x16x32_bf16 v[80:83], v[48:51], v[44:47], 0
         s_lshl_b32 s7, s6, 9
         v_lshlrev_b32 v54, 3, v1
         v_add_u32 v54, s7, v54
         ds_write_b64 v54, v[52:53] offset:{C_VM}
         buffer_store_dwordx4 v[48:51], v14, s[16:19], s82 offen sc1
         buffer_store_dwordx2 v[52:53], v15, s[16:19], s82 offen sc1
         ds_write_b128 v109, v[84:87] offset:1024
         ds_write_b128 v109, v[88:91] offset:2048
         s_nop 0''')
    A('''
         ds_write_b128 v109, v[80:83]
         s_waitcnt lgkmcnt(0)
         s_barrier''')
    stamp(A, 1)
    for w in range(4):
        A(f'ds_read_b128 v[{16+8*w}:{19+8*w}], v5 offset:{C_SC + w*3072}')
        A(f'ds_read_b128 v[{20+8*w}:{23+8*w}], v6 offset:{C_SC + w*3072}')
    A('s_waitcnt lgkmcnt(4)')
    for i in range(0, 8, 2): A(f'v_pk_add_f32 v[{80+i}:{81+i}], v[{16+i}:{17+i}], v[{24+i}:{25+i}]')
    A('s_waitcnt lgkmcnt(0)')
    for i in range(0, 8, 2): A(f'v_pk_add_f32 v[{32+i}:{33+i}], v[{32+i}:{33+i}], v[{40+i}:{41+i}]')
    for i in range(0, 8, 2): A(f'v_pk_add_f32 v[{80+i}:{81+i}], v[{80+i}:{81+i}], v[{32+i}:{33+i}]')
    A('v_lshlrev_b32 v54, 3, v1')
    for pt in range(4):
        A(f'ds_read_b64 v[{16+2*pt}:{17+2*pt}], v54 offset:{C_VM + pt*512}')
    A('v_mov_b32 v94, 0x3db504f3\nv_mov_b32 v95, 0x3db504f3')
    for i in range(0, 8, 2):
        A(f'''v_cvt_pk_bf16_f32 v92, v{80+i}, v{81+i}
              v_lshlrev_b32 v{80+i}, 16, v92
              v_and_b32 v{81+i}, 0xffff0000, v92
              v_pk_mul_f32 v[{80+i}:{81+i}], v[{80+i}:{81+i}], v[94:95]
              v_cvt_pk_bf16_f32 v92, v{80+i}, v{81+i}
              v_lshlrev_b32 v{80+i}, 16, v92
              v_and_b32 v{81+i}, 0xffff0000, v92''')
    A('v_mov_b32 v92, 0xff800000')
    for i in range(4): A(f'v_cndmask_b32 v{80+i}, v{80+i}, v92, s[76:77]')
    for i in range(4): A(f'v_cndmask_b32 v{84+i}, v{84+i}, v92, s[94:95]')
    A('''v_max3_f32 v92, v80, v81, v82
         v_max3_f32 v93, v83, v84, v85
         v_max3_f32 v92, v92, v86, v87
         v_max_f32 v92, v92, v93
         v_mov_b32 v93, v92
         s_nop 1
         v_permlane32_swap_b32 v92, v93
         v_max_f32 v92, v92, v93
         v_mov_b32 v93, v92
         s_nop 1
         v_permlane16_swap_b32 v92, v93
         v_max_f32 v92, v92, v93
         v_mov_b32 v94, 0x3fb8aa3b
         v_mov_b32 v95, 0x3fb8aa3b
         v_max_f32_dpp v92, v92, v92 row_ror:8 row_mask:0xf bank_mask:0xf
         v_mul_f32 v92, 0xbfb8aa3b, v92
         v_mov_b32 v93, v92''')
    for i in range(0, 8, 2): A(f'v_pk_fma_f32 v[{80+i}:{81+i}], v[{80+i}:{81+i}], v[94:95], v[92:93]')
    for i in range(8): A(f'v_exp_f32 v{80+i}, v{80+i}')
    A('''s_nop 0
         v_pk_add_f32 v[92:93], v[80:81], v[82:83]
         v_pk_add_f32 v[94:95], v[84:85], v[86:87]
         v_pk_add_f32 v[92:93], v[92:93], v[94:95]
         v_add_f32 v92, v92, v93
         v_mov_b32 v93, v92
         s_nop 1
         v_permlane32_swap_b32 v92, v93
         v_add_f32 v92, v92, v93
         v_mov_b32 v93, v92
         s_nop 1
         v_permlane16_swap_b32 v92, v93
         v_add_f32 v92, v92, v93
         s_nop 1
         v_add_f32_dpp v92, v92, v92 row_ror:8 row_mask:0xf bank_mask:0xf
         v_rcp_f32 v92, v92
         s_nop 0
         v_mov_b32 v93, v92''')
    for i in range(0, 8, 2): A(f'v_pk_mul_f32 v[{80+i}:{81+i}], v[{80+i}:{81+i}], v[92:93]')
    A('''v_cvt_pk_bf16_f32 v48, v80, v81
         v_cvt_pk_bf16_f32 v49, v82, v83
         v_cvt_pk_bf16_f32 v44, v84, v85
         v_cvt_pk_bf16_f32 v45, v86, v87
         s_nop 0
         v_mov_b32_dpp v46, v48 row_shl:8 row_mask:0xf bank_mask:0xf
         v_mov_b32_dpp v47, v49 row_shl:8 row_mask:0xf bank_mask:0xf
         s_waitcnt lgkmcnt(0)
         s_nop 0''')
    for pt in range(4):
        A(f'v_mfma_f32_16x16x32_bf16 v[{80+4*pt}:{83+4*pt}], v[{64+4*pt}:{67+4*pt}], v[44:47], 0')
    for pt in range(4):
        A(f'v_mfma_f32_16x16x16_bf16 v[{80+4*pt}:{83+4*pt}], v[{16+2*pt}:{17+2*pt}], v[48:49], v[{80+4*pt}:{83+4*pt}]')
    A(f'''s_add_u32 s80, s80, {32*8192}
          s_add_u32 s81, s81, {32*8192}
          s_add_u32 s82, s82, 65536
          s_nop 1''')
    for pt in range(4):
        A(f'''v_cvt_pk_bf16_f32 v{96+2*pt}, v{80+4*pt}, v{81+4*pt}
              v_cvt_pk_bf16_f32 v{97+2*pt}, v{82+4*pt}, v{83+4*pt}''')
    A('s_nop 1')
    def accT(T): return 16+4*T
    def merged_store(P):
        a = accT(2*P); b = accT(2*P+1)
        for r in range(4): A(f'v_mov_b32_dpp v{a+r}, v{b+r} row_shr:8 row_mask:0xf bank_mask:0xc')
        for r in range(4): A(f'v_and_or_b32 v{a+r}, v{a+r}, s78, v111')
        A(f'buffer_store_dwordx4 v[{a}:{a+3}], v10, s[16:19], {"0" if P < 4 else "s86"} offen offset:{(P&3)*1024} sc1')
    for P in range(5):
        for T in (2*P, 2*P+1):
            a = accT(T)
            A(f'v_mfma_f32_16x16x32_bf16 v[{a}:{a+3}], v[{worg(T,0)}:{worg(T,0)+3}], v[96:99], 0')
        for T in (2*P, 2*P+1):
            a = accT(T)
            A(f'v_mfma_f32_16x16x32_bf16 v[{a}:{a+3}], v[{worg(T,1)}:{worg(T,1)+3}], v[100:103], v[{a}:{a+3}]')
        if P >= 1: merged_store(P-1)
    A('s_nop 1')
    merged_store(4)
    if FUSED:
        Lok = A.newlabel('cok'); Lw = A.newlabel('cw')
        A(f's_cmp_ge_u32 s92, 64\ns_cbranch_scc1 {Lok}\nv_mov_b32 v96, s91\ns_mov_b32 s90, 0')
        A.label(Lw)
        A(f'''s_add_u32 s90, s90, 1
              s_cmp_gt_u32 s90, 400000
              s_cbranch_scc1 {Lend}
              buffer_load_dword v97, v96, s[16:19], 0 offen sc1
              s_waitcnt vmcnt(0)
              v_readfirstlane_b32 s7, v97
              s_cmp_ge_u32 s7, 64
              s_cbranch_scc0 {Lw}''')
        A.label(Lok)
    kv_prefetch()
    stamp(A, 2)
    A(f's_cmp_ge_u32 s3, 40\ns_cbranch_scc1 {Lnored}')
    if ADAPT: dsleep(A, 93)
    else:
        for _ in range(D1): A('s_sleep 2')
    Lp = A.newlabel('cpollB')
    A('s_mov_b32 s90, 0')
    A.label(Lp)
    A(f's_add_u32 s90, s90, 1\ns_cmp_gt_u32 s90, 400000\ns_cbranch_scc1 {Lend}')
    for k in range(8):
        A(f's_mov_b32 s7, {k*8*20480}\nbuffer_load_dwordx4 v[{16+4*k}:{19+4*k}], v11, s[16:19], s7 offen sc1')
    A('s_waitcnt vmcnt(0)')
    Lodd = A.newlabel('codd'); Lrdy = A.newlabel('crdy')
    A(f's_bitcmp1_b32 s79, 0\ns_cbranch_scc1 {Lodd}')
    for i in range(0, 32, 4):
        A(f'v_and_b32 v{48+i//4}, v{16+i}, v{17+i}\nv_and_b32 v{96+i//4}, v{18+i}, v{19+i}')
    for i in range(8): A(f'v_and_b32 v{48+i}, v{48+i}, v{96+i}')
    A('''v_and_b32 v48, v48, v49
         v_and_b32 v50, v50, v51
         v_and_b32 v52, v52, v53
         v_and_b32 v54, v54, v55
         v_and_b32 v48, v48, v50
         v_and_b32 v52, v52, v54
         v_and_b32 v48, v48, v52
         v_and_b32 v48, 1, v48
         v_cmp_eq_u32 vcc, 0, v48''')
    A(f's_and_b64 exec, exec, vcc\ns_cbranch_execnz {Lp}\ns_branch {Lrdy}')
    A.label(Lodd)
    for i in range(0, 30, 3): A(f'v_or3_b32 v{48+i//3 if i//3 < 8 else 96+i//3-8}, v{16+i}, v{17+i}, v{18+i}')
    A('''v_or3_b32 v48, v48, v49, v50
         v_or3_b32 v51, v51, v52, v53
         v_or3_b32 v54, v54, v55, v96
         v_or3_b32 v97, v97, v46, v47
         v_or3_b32 v48, v48, v51, v54
         v_or_b32 v48, v48, v97
         v_and_b32 v48, 1, v48
         v_cmp_ne_u32 vcc, 0, v48''')
    A(f's_and_b64 exec, exec, vcc\ns_cbranch_execnz {Lp}')
    A.label(Lrdy)
    A('s_mov_b64 exec, -1')
    if ADAPT: dadapt(A, 93)
    for k in range(0, 16, 2): A(f'v_pk_add_f32 v[{16+k}:{17+k}], v[{16+k}:{17+k}], v[{32+k}:{33+k}]')
    for k in range(0, 8, 2): A(f'v_pk_add_f32 v[{16+k}:{17+k}], v[{16+k}:{17+k}], v[{24+k}:{25+k}]')
    for k in range(0, 4, 2): A(f'v_pk_add_f32 v[{16+k}:{17+k}], v[{16+k}:{17+k}], v[{20+k}:{21+k}]')
    for r in range(4): A(f'v_mov_b32 v{20+r}, v{16+r}')
    A('s_nop 1')
    for r in range(4): A(f'v_permlane32_swap_b32 v{16+r}, v{20+r}')
    for r in range(0, 4, 2): A(f'v_pk_add_f32 v[{16+r}:{17+r}], v[{16+r}:{17+r}], v[{20+r}:{21+r}]')
    for r in range(4): A(f'v_mov_b32 v{20+r}, v{16+r}')
    A('s_nop 1')
    for r in range(4): A(f'v_permlane16_swap_b32 v{16+r}, v{20+r}')
    for r in range(0, 4, 2): A(f'v_pk_add_f32 v[{16+r}:{17+r}], v[{16+r}:{17+r}], v[{20+r}:{21+r}]')
    A('s_nop 1')
    for r in range(4): A(f'v_add_f32_dpp v{16+r}, v{16+r}, v{16+r} row_ror:8 row_mask:0xf bank_mask:0xf')
    Lnp = A.newlabel('cnopub')
    A('''v_cvt_pk_bf16_f32 v20, v16, v17
         v_cvt_pk_bf16_f32 v21, v18, v19
         v_mov_b32 v22, 0x7fff7fff
         v_cmp_eq_u32 vcc, -1, v20
         s_nop 1
         v_cndmask_b32 v20, v20, v22, vcc
         v_cmp_eq_u32 vcc, -1, v21
         s_nop 1
         v_cndmask_b32 v21, v21, v22, vcc
         buffer_store_dwordx2 v[20:21], v12, s[16:19], s83 offen sc1''')
    A.label(Lnp)
    Lgo = A.newlabel('cgo')
    if ADAPT:
        A.label(Lnored)
        dsleep(A, 94)
    else:
        for _ in range(D2): A('s_sleep 2')
        A(f's_branch {Lgo}')
        A.label(Lnored)
        for _ in range(D3): A('s_sleep 2')
    A.label(Lgo)
    stamp(A, 3)
    Lg = A.newlabel('cpollA')
    A('s_mov_b32 s90, 0')
    A.label(Lg)
    A(f's_add_u32 s90, s90, 1\ns_cmp_gt_u32 s90, 400000\ns_cbranch_scc1 {Lend}')
    for k in range(5):
        A(f's_add_u32 s7, s83, {k*4096}\nbuffer_load_dwordx2 v[{24+2*k}:{25+2*k}], v13, s[16:19], s7 offen sc1')
    A('s_waitcnt vmcnt(0)')
    A('''v_max3_u32 v34, v24, v25, v26
         v_max3_u32 v35, v27, v28, v29
         v_max3_u32 v36, v30, v31, v32
         v_max3_u32 v34, v34, v35, v33
         v_max_u32 v34, v34, v36
         v_cmp_eq_u32 vcc, -1, v34''')
    A(f's_and_b64 exec, exec, vcc\ns_cbranch_execnz {Lg}\ns_mov_b64 exec, -1')
    if ADAPT: dadapt(A, 94)
    stamp(A, 4)
    for k in range(5):
        A(f'ds_write_b64 v{104+k}, v[{24+2*k}:{25+2*k}]')
    def cch_signal_OLD():
        A(f'''s_lshl_b32 s7, s3, 4
              s_lshl_b32 s100, s6, 2
              s_add_u32 s7, s7, s100
              s_add_u32 s7, s7, {cnt_addr(CCH)}
              s_add_u32 s100, s79, 1
              v_mov_b32 v40, s100
              v_mov_b32 v41, s7
              v_cmp_eq_u32 vcc, 0, v1
              s_and_saveexec_b64 s[84:85], vcc
              buffer_store_dword v40, v41, s[16:19], 0 offen sc1
              s_mov_b64 exec, s[84:85]''')
    A(f'''s_add_u32 s79, s79, 1
          s_add_u32 s83, s83, 20480
          s_add_u32 s87, s87, 10240
          s_add_u32 s88, s88, 10240
          v_xor_b32 v111, 1, v111
          s_branch {Ltop}''')
    A.label(Lfin)
    A('''buffer_store_dwordx4 v[48:51], v14, s[16:19], s82 offen sc1
         buffer_store_dwordx2 v[52:53], v15, s[16:19], s82 offen sc1''')
    if FUSED:
        A('s_waitcnt vmcnt(0)')
        cch_signal(1)
    A.label(Lend)
    A('s_mov_b64 exec, -1')
    if PROF:
        for i in range(6): A(f'v_mov_b32 v{16+i}, s{92+i}')
        A(f'''s_lshl_b32 s7, s3, 7
              s_lshl_b32 s37, s6, 5
              s_add_u32 s7, s7, s37
              s_add_u32 s7, s7, {FLAGS}
              v_mov_b32 v24, s7
              buffer_store_dwordx4 v[16:19], v24, s[16:19], 0 offen
              buffer_store_dwordx2 v[20:21], v24, s[16:19], 0 offen offset:16''')

def task_init(A):
    A(f'''s_lshl_b32 s4, s3, 12
          v_lshlrev_b32 v1, 4, v0
          v_add_u32 v1, s4, v1
          v_mov_b32 v4, 0
          v_mov_b32 v5, 0
          v_mov_b32 v6, 0
          v_mov_b32 v7, 0
          v_mov_b32 v8, -1
          v_mov_b32 v9, -1
          v_mov_b32 v10, -1
          v_mov_b32 v11, -1''')
    for p in range(5):
        A(f's_mov_b32 s5, {PART + p*262144}\nbuffer_store_dwordx4 v[4:7], v1, s[16:19], s5 offen')
    for p in range(3):
        A(f's_mov_b32 s5, {MEMB + p*262144}\nbuffer_store_dwordx4 v[8:11], v1, s[16:19], s5 offen')

if __name__ == '__main__':
    build([('init_kernel', 64, 0, task_init, (256, 256)),
           ('proj_kernel', 1536, P_LDS, task_P, (256, 256)),
           ('chain_kernel', 64, C_LDS, task_chain, (512, 256))], 't2.s')
    print('C_LDS', C_LDS)
```

```python
import sys
import chain
from gen import *
from chain import CKV, CQ, CF1, CF2, CF3, CG_, CCH, CT, cnt_addr, C_LDS
from post import task_T, task_G
from fft import task_F1, task_F2, task_F3
from o2 import task_O2
chain.FUSED = True
QSLOT = 152000
SDLY = int(__import__('os').environ.get('SDLY', '0'))
NWG = 256
R_KV, R_G, R_Q, R_F1, R_F2, R_F3, R_TO = 0, 1024, 1088, 1600, 1792, 2113, 2273
KSPL = 56
R_TB = R_TO + KSPL*18
NT = R_TB + (65-KSPL)*48

def wait_cnt(A, Ldead, addr_code, tgt, srdn='s[16:19]', slp=24):
    Lw = A.newlabel('ww'); Lok = A.newlabel('wok')
    A(addr_code)
    A('v_mov_b32 v250, s100\ns_mov_b32 s101, 0')
    A.label(Lw)
    A(f'''buffer_load_dword v251, v250, {srdn}, 0 offen sc1
          s_waitcnt vmcnt(0)
          v_readfirstlane_b32 s100, v251
          s_cmp_ge_u32 s100, {tgt}
          s_cbranch_scc1 {Lok}
          s_add_u32 s101, s101, 1
          s_cmp_gt_u32 s101, 200000
          s_cbranch_scc1 {Ldead}
          s_sleep {slp}
          s_branch {Lw}''')
    A.label(Lok)

def wait_progress(A, Ldead):
    Lw = A.newlabel('wp'); Lok = A.newlabel('wpok'); Ls = A.newlabel('wps')
    A(f'v_mov_b32 v250, {cnt_addr(chain.CPROG)}\ns_mov_b32 s101, 0')
    A.label(Lw)
    A(f'''buffer_load_dword v251, v250, s[16:19], 0 offen sc1
          s_waitcnt vmcnt(0)
          v_readfirstlane_b32 s100, v251
          s_add_u32 s100, s100, 1
          s_cmp_ge_u32 s100, s95
          s_cbranch_scc1 {Lok}
          s_add_u32 s101, s101, 1
          s_cmp_gt_u32 s101, 100000
          s_cbranch_scc1 {Ldead}
          s_sub_u32 s100, s95, s100''')
    A.label(Ls)
    A(f'''s_sleep 110
          s_sub_u32 s100, s100, 1
          s_cmp_lg_u32 s100, 0
          s_cbranch_scc1 {Ls}
          s_branch {Lw}''')
    A.label(Lok)

def wait_flags(A, Ldead):
    Lw = A.newlabel('wf'); Lok = A.newlabel('wfok')
    A(f'''v_and_b32 v250, 31, v0
          v_lshlrev_b32 v250, 2, v250
          s_lshl_b32 s100, s5, 7
          s_add_u32 s100, s100, {cnt_addr(CCH)}
          v_add_u32 v250, s100, v250
          s_mov_b32 s101, 0''')
    A.label(Lw)
    A(f'''buffer_load_dword v251, v250, s[16:19], 0 offen sc1
          s_waitcnt vmcnt(0)
          v_cmp_ge_u32 vcc, s95, v251
          s_cbranch_vccz {Lok}
          s_add_u32 s101, s101, 1
          s_cmp_gt_u32 s101, 200000
          s_cbranch_scc1 {Ldead}
          s_sleep 12
          s_branch {Lw}''')
    A.label(Lok)

def waits(A, Ldead, fns):
    Lsk = A.newlabel('wsk')
    A(f's_cmp_lg_u32 s39, 0\ns_cbranch_scc1 {Lsk}')
    for f in fns: f()
    A.label(Lsk)
    A('s_barrier')

def fused_body(A):
    Lwork = A.newlabel('work'); Lexit = A.newlabel('fexit')
    srd(A, 96, I_DBG, 256)
    A(f's_cmp_ge_u32 s2, 64\ns_cbranch_scc1 {Lwork}')
    chain.task_chain(A)
    A(f's_branch {Lexit}')
    A.label(Lwork)
    A('v_lshrrev_b32 v250, 6, v0\ns_nop 0\nv_readfirstlane_b32 s39, v250')
    waits(A, Lexit, [lambda: wait_cnt(A, Lexit, 's_mov_b32 s100, 128', 64, 's[96:99]', 4)])
    if SDLY:
        Lsd = A.newlabel('sdl')
        A(f's_cmp_lt_u32 s2, 128\ns_cbranch_scc1 {Lsd}')
        for _ in range(SDLY): A('s_sleep 40')
        A.label(Lsd)
    A('s_mov_b32 s94, 4000')
    A('s_mov_b32 s93, -1')
    Lloop = A.newlabel('wloop'); A.label(Lloop)
    Lns = A.newlabel('nosig'); Lskip = A.newlabel('skipf')
    if chain.TRACE:
        A(f'''s_waitcnt vmcnt(0)
              s_memrealtime s[100:101]
              s_waitcnt lgkmcnt(0)
              v_mov_b32 v250, s100
              s_lshl_b32 s101, s94, 2
              s_add_u32 s101, s101, {chain.TRC + 65536 + 16384}
              v_mov_b32 v251, s101
              buffer_store_dword v250, v251, s[16:19], 0 offen''')
    A(f'''s_waitcnt vmcnt(0) lgkmcnt(0)
          s_barrier
          v_cmp_eq_u32 vcc, 0, v0
          s_and_saveexec_b64 s[84:85], vcc
          s_cbranch_execz {Lskip}
          v_mov_b32 v250, 1
          s_cmp_eq_u32 s93, -1
          s_cbranch_scc1 {Lns}
          v_mov_b32 v251, s93
          buffer_atomic_add v250, v251, s[16:19], 0 offen''')
    A.label(Lns)
    A(f'''v_mov_b32 v251, 0
          buffer_atomic_add v250, v251, s[96:99], 0 offen sc0
          s_waitcnt vmcnt(0)
          v_mov_b32 v251, {QSLOT}
          ds_write_b32 v251, v250''')
    A.label(Lskip)
    A(f'''s_mov_b64 exec, s[84:85]
          s_waitcnt lgkmcnt(0)
          s_barrier
          v_mov_b32 v251, {QSLOT}
          ds_read_b32 v250, v251
          s_waitcnt lgkmcnt(0)
          v_readfirstlane_b32 s94, v250
          s_mov_b32 s93, -1
          s_cmp_ge_u32 s94, {NT}
          s_cbranch_scc1 {Lexit}''')
    if chain.TRACE:
        A(f'''s_memrealtime s[100:101]
              s_waitcnt lgkmcnt(0)
              v_mov_b32 v250, s100
              s_lshl_b32 s101, s94, 2
              s_add_u32 s101, s101, {chain.TRC + 65536}
              v_mov_b32 v251, s101
              buffer_store_dword v250, v251, s[16:19], 0 offen''')
    labs = {k: A.newlabel('t'+k) for k in ('P','G','F1','F2','F3','T','O')}
    LQ = A.newlabel('tQ'); LTO = A.newlabel('tTO')
    A(f'''s_cmp_lt_u32 s94, {R_G}
          s_cbranch_scc0 {labs['G']}
          s_mov_b32 s3, s94
          s_lshr_b32 s93, s3, 6
          s_lshl_b32 s93, s93, 6
          s_add_u32 s93, s93, {cnt_addr(CKV)}
          s_branch {labs['P']}''')
    A.label(labs['G'])
    A(f'''s_cmp_lt_u32 s94, {R_Q}
          s_cbranch_scc0 {LQ}
          s_sub_u32 s3, s94, {R_G}
          s_mov_b32 s93, {cnt_addr(CG_)}''')
    task_G(A); A(f's_branch {Lloop}')
    A.label(LQ)
    A(f'''s_cmp_lt_u32 s94, {R_F1}
          s_cbranch_scc0 {labs['F1']}
          s_sub_u32 s3, s94, {R_Q}
          s_lshr_b32 s93, s3, 5
          s_lshl_b32 s93, s93, 6
          s_add_u32 s93, s93, {cnt_addr(CQ)}
          s_add_u32 s3, s3, 1024''')
    A.label(labs['P'])
    task_P(A); A(f's_branch {Lloop}')
    A.label(labs['F1'])
    A(f'''s_cmp_lt_u32 s94, {R_F2}
          s_cbranch_scc0 {labs['F2']}
          s_sub_u32 s3, s94, {R_F1}
          s_mov_b32 s93, {cnt_addr(CF1)}''')
    task_F1(A); A(f's_branch {Lloop}')
    A.label(labs['F2'])
    A(f'''s_cmp_lt_u32 s94, {R_F3}
          s_cbranch_scc0 {labs['F3']}
          s_sub_u32 s3, s94, {R_F2}
          s_mov_b32 s93, {cnt_addr(CF2)}''')
    waits(A, Lexit, [lambda: wait_cnt(A, Lexit, f's_mov_b32 s100, {cnt_addr(CF1)}', 192, slp=40)])
    task_F2(A); A(f's_branch {Lloop}')
    A.label(labs['F3'])
    A(f'''s_cmp_lt_u32 s94, {R_TO}
          s_cbranch_scc0 {LTO}
          s_sub_u32 s3, s94, {R_F3}
          s_mul_i32 s93, s3, 52429
          s_lshr_b32 s93, s93, 18
          s_lshl_b32 s93, s93, 6
          s_add_u32 s93, s93, {cnt_addr(CF3)}''')
    waits(A, Lexit, [lambda: wait_cnt(A, Lexit, f's_mov_b32 s100, {cnt_addr(CF2)}', 321, slp=40)])
    task_F3(A); A(f's_branch {Lloop}')
    A.label(LTO)
    LTB = A.newlabel('tTB'); LTC = A.newlabel('tTC')
    A(f'''s_cmp_lt_u32 s94, {R_TB}
          s_cbranch_scc0 {LTB}
          s_sub_u32 s95, s94, {R_TO}
          s_mul_i32 s4, s95, 3641            ; /18
          s_lshr_b32 s4, s4, 16              ; k
          s_mul_i32 s5, s4, 18
          s_sub_u32 s5, s95, s5              ; j
          s_branch {LTC}''')
    A.label(LTB)
    A(f'''s_sub_u32 s95, s94, {R_TB}
          s_mul_i32 s4, s95, 1366            ; /48
          s_lshr_b32 s4, s4, 16
          s_mul_i32 s5, s4, 48
          s_sub_u32 s5, s95, s5
          s_add_u32 s4, s4, {KSPL}''')
    A.label(LTC)
    A(f'''
          s_cmp_lt_u32 s5, 8
          s_cbranch_scc0 {labs['O']}
          s_cmp_ge_u32 s4, 64
          s_cbranch_scc1 {Lloop}
          s_lshl_b32 s3, s4, 3
          s_add_u32 s3, s3, s5
          s_lshl_b32 s93, s4, 6
          s_add_u32 s93, s93, {cnt_addr(CT)}
          s_mov_b32 s95, s4''')
    waits(A, Lexit, [lambda: wait_progress(A, Lexit),
      lambda: wait_cnt(A, Lexit, f's_lshr_b32 s100, s95, 2\ns_lshl_b32 s100, s100, 6\ns_add_u32 s100, s100, {cnt_addr(CKV)}', 64),
      lambda: wait_cnt(A, Lexit, f's_lshr_b32 s100, s95, 2\ns_lshl_b32 s100, s100, 6\ns_add_u32 s100, s100, {cnt_addr(CQ)}', 32)])
    A('s_mov_b32 s38, s5')
    def tmid():
        A('s_mov_b32 s37, s5\ns_mov_b32 s5, s38')
        waits(A, Lexit, [lambda: wait_flags(A, Lexit)])
        A('s_mov_b32 s5, s37')
    task_T(A, tmid); A(f's_branch {Lloop}')
    A.label(labs['O'])
    A(f'''s_cmp_eq_u32 s4, 0
          s_cbranch_scc1 {Lloop}
          s_sub_u32 s95, s4, 1               ; seg
          s_cmp_ge_u32 s4, {KSPL}
          s_cselect_b32 s3, 40, 10
          s_mul_i32 s3, s95, s3
          s_add_u32 s3, s3, s5
          s_sub_u32 s3, s3, 8''')
    ctw = lambda: wait_cnt(A, Lexit, f's_lshl_b32 s100, s95, 6\ns_add_u32 s100, s100, {cnt_addr(CT)}', 8, slp=8)
    waits(A, Lexit, [lambda: wait_progress(A, Lexit),
      lambda: wait_cnt(A, Lexit, f's_lshr_b32 s100, s95, 1\ns_lshl_b32 s100, s100, 6\ns_add_u32 s100, s100, {cnt_addr(CF3)}', 5),
      lambda: wait_cnt(A, Lexit, f's_mov_b32 s100, {cnt_addr(CG_)}', 64)])
    LOS = A.newlabel('tOS')
    A(f's_cmp_ge_u32 s95, {KSPL-1}\ns_cbranch_scc1 {LOS}')
    waits(A, Lexit, [ctw])
    task_O2(A); A(f's_branch {Lloop}')
    A.label(LOS)
    def omid():
        A('s_mov_b32 s37, s39\ns_mov_b32 s39, s6')
        waits(A, Lexit, [ctw])
        A('s_mov_b32 s39, s37')
    task_O2(A, True, omid)
    A('v_lshrrev_b32 v250, 6, v0\ns_nop 0\nv_readfirstlane_b32 s39, v250')
    A(f's_branch {Lloop}')
    A.label(Lexit)

if __name__ == '__main__':
    d = [int(x) for x in sys.argv[2:5]] if len(sys.argv) > 4 else (12, 12, 36)
    chain.D1, chain.D2, chain.D3 = d
    chain.TRACE = len(sys.argv) > 5 and sys.argv[5] == 't'
    assert all((k*3641)>>16 == k//18 for k in range(65*18)) and all((k*1366)>>16 == k//48 for k in range(9*48))
    build([('fused_kernel', NWG, C_LDS, fused_body, (512, 256))], sys.argv[1])
```
